```python
import torch

def _softmax(x, axis=-1):
    return torch.softmax(x, dim=axis)
def _gelu(x):
    return torch.nn.functional.gelu(x, approximate="tanh")
def _silu(x):
    return torch.nn.functional.silu(x)
def _sigmoid(x):
    return torch.sigmoid(x)
def _layernorm(x, axis=-1, eps=1e-5):
    m = x.mean(dim=axis, keepdim=True)
    v = x.var(dim=axis, keepdim=True, unbiased=False)
    return (x - m) / torch.sqrt(v + eps)
def _scatter_add(tgt, idx, src, axis=0):
    return tgt.clone().index_add_(axis, idx, src)
def _segment_sum(src, seg, n):
    out = torch.zeros((n,) + src.shape[1:], dtype=src.dtype)
    return out.index_add_(0, seg, src)
def _pad(x, pw):
    flat = tuple(v for pair in reversed(pw) for v in pair)
    return torch.nn.functional.pad(x, flat)

kernel_name = 'gated_mix__ssm_conv_s4__dense_activation_relu__prompt'

def setup_inputs():

    _w = (lambda a: (lambda t: t.to(torch.bfloat16) if t.is_floating_point() else t)(torch.as_tensor(a)))
    def _A_setup():
        B, L, D, N = 1, 2048, 640, 192
        A_re = -(lambda _x: torch.exp(torch.as_tensor(_x)))((lambda *s: torch.randn(*s, dtype=torch.bfloat16) * 6.4)(D, N))
        A_im = torch.pi * (lambda *s: torch.randn(*s, dtype=torch.bfloat16) * 0.1)(D, N)
        B_re = (lambda *s: torch.randn(*s, dtype=torch.bfloat16) * 0.2)(D, N)
        B_im = (lambda *s: torch.randn(*s, dtype=torch.bfloat16) * 0.2)(D, N)
        C_re = (lambda *s: torch.randn(*s, dtype=torch.bfloat16) * 0.2)(D, N)
        C_im = (lambda *s: torch.randn(*s, dtype=torch.bfloat16) * 0.2)(D, N)
        log_dt = (lambda *s: torch.randn(*s, dtype=torch.bfloat16) * 0.1)(D) * 0.5 - 4.0
        Dskip = (lambda *s: torch.randn(*s, dtype=torch.bfloat16) * 0.1)(D)
        return {
            "u": _w((lambda *s: torch.randn(*s, dtype=torch.bfloat16) * 0.05)(B, L, D)),
            "A_re": _w(A_re),
            "A_im": _w(A_im),
            "B_re": _w(B_re),
            "B_im": _w(B_im),
            "C_re": _w(C_re),
            "C_im": _w(C_im),
            "log_dt": _w(log_dt),
            "Dskip": _w(Dskip),
        }
    _A_in = _A_setup()

    def _B_setup():
        B, S, D, Dff = 1, 2048, 640, 1536
        return {
            "x": _w((lambda *s: torch.randn(*s, dtype=torch.bfloat16) * 0.05)(B, S, D)),
            "w1": _w((lambda *s: torch.randn(*s, dtype=torch.bfloat16) * 0.05)(D, Dff)),
            "w2": _w((lambda *s: torch.randn(*s, dtype=torch.bfloat16) * 0.05)(Dff, D)),
        }
    _B_in = _B_setup()

    return {
        "A_u": _A_in["u"],
        "A_A_re": _A_in["A_re"],
        "A_A_im": _A_in["A_im"],
        "A_B_re": _A_in["B_re"],
        "A_B_im": _A_in["B_im"],
        "A_C_re": _A_in["C_re"],
        "A_C_im": _A_in["C_im"],
        "A_log_dt": _A_in["log_dt"],
        "A_Dskip": _A_in["Dskip"],
        "B_x": _B_in["x"],
        "B_w1": _B_in["w1"],
        "B_w2": _B_in["w2"],
        "gate_w": _w((lambda *s: torch.randn(*s, dtype=torch.bfloat16) * 0.05)(640) * 16.0),
    }

def reference(A_u, A_A_re, A_A_im, A_B_re, A_B_im, A_C_re, A_C_im, A_log_dt, A_Dskip, B_x, B_w1, B_w2, gate_w):
    def _A_ref(u, A_re, A_im, B_re, B_im, C_re, C_im, log_dt, Dskip):
        Bsz, L, D = u.shape
        dt = torch.exp(log_dt)[:, None]
        A = A_re + 1j * A_im
        Bc = B_re + 1j * B_im
        Cc = C_re + 1j * C_im
        logdA = dt * A
        dB = dt * Bc
        l = (lambda x, dt: x.to(dt))(torch.arange(L), A_re.dtype)
        P = torch.exp(logdA[:, :, None] * l[None, None, :])
        K = torch.einsum("dn,dnl,dn->dl", Cc, P, dB).real
        L2 = 2 * L
        Kp = _pad(K, ((0, 0), (0, L)))
        up = (lambda x, *d: x.permute(*d))(u, 0, 2, 1)
        up = _pad(up, ((0, 0), (0, 0), (0, L)))
        Kf = (lambda x, axes=(-2,-1): torch.fft.rfft2(x.float(), dim=axes))(Kp[:, None, :], axes=(-2, -1))
        Uf = (lambda x, axes=(-2,-1): torch.fft.rfft2(x.float(), dim=axes))(up[:, :, None, :], axes=(-2, -1))
        Yf = Uf * Kf[None, :, :, :]
        y = (lambda x, s, axes=(-2,-1): torch.fft.irfft2(x, s=s, dim=axes).to(torch.bfloat16))(Yf, (1, L2), axes=(-2, -1))[:, :, 0, :L]
        y = (lambda x, *d: x.permute(*d))(y, 0, 2, 1) + u * Dskip[None, None, :]
        return y

    def _B_ref(x, w1, w2):
        h = torch.einsum("bsd,df->bsf", x, w1)
        zero = torch.zeros_like(h)
        h = torch.maximum(h, zero)
        return torch.einsum("bsf,fd->bsd", h, w2)

    x = A_u
    g = _sigmoid((x * gate_w).sum(-1, keepdims=True))
    a = _A_ref(x, A_A_re, A_A_im, A_B_re, A_B_im, A_C_re, A_C_im, A_log_dt, A_Dskip)
    b = _B_ref(x, B_w1, B_w2)
    return g * a + (1 - g) * b
```

```python
import re

TRANS = ("v_exp_f32", "v_log_f32", "v_rcp_f32", "v_rsq_f32", "v_sqrt_f32", "v_sin_f32", "v_cos_f32")

def regs_of(tok):
    tok = tok.strip()
    m = re.fullmatch(r"-?\|?([vs])(\d+)\|?", tok)
    if m: return {(m.group(1), int(m.group(2)))}
    m = re.fullmatch(r"-?([vs])\[(\d+):(\d+)\]", tok)
    if m: return {(m.group(1), i) for i in range(int(m.group(2)), int(m.group(3)) + 1)}
    if tok == "vcc": return {("s", 106), ("s", 107)}
    if tok == "exec": return {("s", 126), ("s", 127)}
    if tok == "m0": return {("s", 124)}
    return set()

class Ins:
    def __init__(self, text):
        self.text = text
        t = text.split(";")[0].strip()
        self.op = t.split()[0] if t else ""
        rest = t[len(self.op):].strip()
        ops = [o.strip() for o in re.split(r",(?![^\[]*\])", rest)] if rest else []
        self.mods = ""
        if ops:
            parts = ops[-1].split(None, 1)
            ops[-1] = parts[0]
            self.mods = parts[1] if len(parts) > 1 else ""
        self.ops = ops
        op = self.op
        self.cls = "other"; self.dst = set(); self.src = set(); self.passes = 0
        self.srcC = set(); self.srcAB = set(); self.stdata = set()
        R = [regs_of(o) for o in ops]
        U = lambda L: set().union(*L) if L else set()
        if op.startswith("v_mfma"):
            self.cls = "mfma"; self.dst = R[0]; self.srcAB = R[1] | R[2]; self.srcC = R[3]; self.src = self.srcAB | self.srcC
            self.passes = 8 if "32x32" in op else 4
        elif op.startswith("v_"):
            self.cls = "valu"
            if op.startswith("v_permlane") and "swap" in op:
                self.dst = R[0] | R[1]; self.src = R[0] | R[1]
            elif op.startswith("v_cmp"):
                self.dst = R[0]; self.src = U(R[1:])
            elif op == "v_nop":
                pass
            else:
                self.dst = R[0]; self.src = U(R[1:])
                if op.startswith(("v_fmac", "v_dot2c", "v_writelane")) or "_dpp" in op or "d16" in op: self.src |= R[0]
                if op.startswith("v_cndmask") and len(ops) == 3: self.src |= regs_of("vcc")
            self.dpp = ("_dpp" in op) or ("row_" in self.mods) or ("wave_" in self.mods) or ("quad_perm" in self.mods)
        elif op.startswith("ds_"):
            self.cls = "ds"
            if op.startswith("ds_read"): self.dst = R[0]; self.src = U(R[1:])
            else: self.src = U(R)
        elif op.startswith(("buffer_", "global_")):
            self.cls = "vmem"
            lds = " lds" in (" " + self.mods)
            self.lds = lds
            if "_load" in op and not lds:
                self.dst = R[0]; self.src = U(R[1:])
                if "d16" in op: self.src |= R[0]
            elif "_store" in op:
                self.src = U(R)
                d = R[0] if op.startswith("buffer_") else R[1]
                if len(d) >= 3: self.stdata = d
            else:
                self.src = U(R)
        elif op.startswith("s_"):
            self.cls = "salu"
            if op.startswith(("s_load", "s_buffer_load", "s_memtime", "s_memrealtime")):
                self.cls = "smem"; self.dst = R[0]; self.src = U(R[1:])
            elif op.startswith(("s_cmp", "s_cbranch", "s_branch", "s_waitcnt", "s_nop", "s_barrier", "s_endpgm", "s_setprio", "s_sleep", "s_bitcmp")):
                self.src = U(R)
            else:
                self.dst = R[0]; self.src = U(R[1:])
                if "saveexec" in op: self.dst |= regs_of("exec")
    def states(self):
        if self.op == "s_nop": return int(self.ops[0]) + 1
        return 1

def V(x): return {r for r in x if r[0] == "v"}
def S(x): return {r for r in x if r[0] == "s"}

def need(prev, cur):
    n = 0
    pv = prev.cls == "valu"
    if pv and cur.cls == "mfma" and V(prev.dst) & cur.src: n = max(n, 2)
    if prev.cls == "mfma":
        big = 12 if prev.passes == 8 else 8
        if cur.cls == "valu" and prev.dst & (cur.src | cur.dst): n = max(n, big)
        if cur.cls in ("ds", "vmem") and prev.dst & (cur.src | cur.dst): n = max(n, big)
        if cur.cls == "mfma":
            if prev.dst & cur.srcAB: n = max(n, big)
            if prev.dst & cur.srcC and not (prev.dst == cur.srcC and prev.passes == cur.passes): n = max(n, big - 2)
            if prev.dst & cur.dst and not (prev.dst == cur.srcC): n = max(n, big)
        if cur.cls == "valu" and prev.srcC & cur.dst: n = max(n, 7 if prev.passes == 8 else 3)
    if pv and prev.op.replace("_e32", "").replace("_e64", "") in TRANS and cur.cls in ("valu",) and V(prev.dst) & cur.src: n = max(n, 1)
    if pv and cur.cls == "valu":
        if (getattr(cur, "dpp", False) or cur.op.startswith("v_permlane")) and V(prev.dst) & cur.src: n = max(n, 2)
        if cur.op.startswith(("v_readlane", "v_readfirstlane")) and V(prev.dst) & cur.src: n = max(n, 1)
        if S(prev.dst) & cur.src: n = max(n, 4 if cur.op.startswith(("v_readlane", "v_writelane")) else 2)
        if prev.op.startswith("v_dot") and V(prev.dst) & (cur.src | cur.dst) and prev.op != cur.op: n = max(n, 3)
    if pv and cur.cls == "vmem" and S(prev.dst) & cur.src: n = max(n, 5)
    if prev.cls == "salu" and ("s", 124) in prev.dst and cur.cls == "vmem" and getattr(cur, "lds", False): n = max(n, 1)
    if prev.stdata and prev.stdata & cur.dst: n = max(n, 2 if cur.cls == "valu" else 1)
    return n

class Asm:
    def __init__(self):
        self.lines = []
        self.vm = 0; self.lg = 0
        self.uid = 0
    def e(self, text):
        for t in text.strip().split("\n"):
            t = t.strip()
            if not t or t.startswith(";"): continue
            if t.endswith(":"):
                self.lines.append(t); continue
            i = Ins(t)
            self.lines.append(i)
            if i.cls == "vmem": self.vm += 1
            if i.cls == "ds": self.lg += 1
        return self
    __call__ = e
    def vmt(self): return self.vm
    def lgt(self): return self.lg
    def wait(self, vm=None, lg=None):
        s = []
        if vm is not None:
            n = self.vm - vm; assert 0 <= n, n
            if n <= 63: s.append(f"vmcnt({n})")
            else: raise AssertionError(f"vmcnt {n} > 63")
        if lg is not None:
            n = self.lg - lg; assert n >= 0
            s.append(f"lgkmcnt({min(n, 15)})")
        if s: self.e("s_waitcnt " + " ".join(s))
    def label(self, base):
        self.uid += 1
        return f"L{base}_{self.uid}"
    def finish(self, check=True):
        out = []; hist = []
        vmq = []; lgq = []
        for ln in self.lines:
            if isinstance(ln, str):
                out.append(ln); continue
            req = 0; dist = 0
            for p in reversed(hist):
                r = need(p, ln) - dist
                if r > req: req = r
                dist += p.states()
                if dist > 24: break
            while req > 0:
                k = min(req, 8)
                nop = Ins(f"s_nop {k-1}"); out.append("    " + nop.text); hist.append(nop); req -= k
            if check:
                if ln.op == "s_waitcnt":
                    m = re.search(r"vmcnt\((\d+)\)", ln.text)
                    if m:
                        n = int(m.group(1)); vmq = vmq[len(vmq) - n:] if n < len(vmq) else vmq
                        if n == 0: vmq = []
                    m = re.search(r"lgkmcnt\((\d+)\)", ln.text)
                    if m:
                        n = int(m.group(1))
                        if any(x[1] == "smem" for x in lgq) and n != 0:
                            raise AssertionError("counted lgkm wait with smem outstanding: " + ln.text)
                        lgq = lgq[len(lgq) - n:] if n < len(lgq) else lgq
                        if n == 0: lgq = []
                else:
                    touched = ln.src | ln.dst
                    for q in (vmq, lgq):
                        for (d, c, t) in q:
                            if d & touched and not ("d16" in ln.op and ln.cls == "vmem"):
                                raise AssertionError(f"use of pending load result: '{ln.text}' vs '{t}'")
                    if ln.cls == "vmem": vmq.append((ln.dst, "vmem", ln.text))
                    if ln.cls in ("ds", "smem"): lgq.append((ln.dst, ln.cls, ln.text))
                    if ln.op in ("s_endpgm", "s_branch"): vmq = []; lgq = []
            out.append("    " + ln.text); hist.append(ln)
        return "\n".join(out) + "\n"
```

```python
import sys, struct
sys.path.insert(0, "work")
from asmgen import Asm

NAME = "gated_mix__ssm_conv_s4__dense_activation_relu__prompt"
KN = NAME + "_kernel"
WS_E = 0; WS_FH = 0x1000; WS_FW = 0x2000; WS_FU = 0x3000; WS_FA = 0x4000; WS_G = 0x10000
WS_W2F = 0x100000; WS_UT = 0x300000; WS_AT = 0x600000; WS_HF = 0x900000; WS_SIZE = 0x1000000
WS_K = 0x1000000
WS_ST = 0x2000000
SPIN = 20000
def f32(x): return "0x%08x" % struct.unpack("<I", struct.pack("<f", x))[0]
LOG2E = 1.4426950408889634

sX, sW1, sWS, sOUT, sW2, sGW = "s[48:51]", "s[52:55]", "s[56:59]", "s[60:63]", "s[64:67]", "s[68:71]"
TAG = "s4"

class Gen:
    def __init__(self, prof=False, dumpk=False):
        self.a = Asm(); self.prof = prof; self.dumpk = dumpk
        self.nst = 0
    def stamp(self, i):
        if not self.prof: return
        self.a(f"s_memrealtime s[{80+2*i}:{81+2*i}]\ns_waitcnt lgkmcnt(0)")
    def end(self, n):
        a = self.a
        if self.prof:
            self.stamp(n)
            a(f"""s_lshl_b32 s5, s2, 2
                  s_add_u32 s5, s5, s3
                  s_lshl_b32 s5, s5, 6
                  s_add_u32 s5, s5, {WS_ST}
                  v_mov_b32 v2, s5""")
            for i in range(n + 1):
                a(f"v_mov_b32 v3, s{80+2*i}\nglobal_store_dword v2, v3, s[46:47] offset:{4*i}")
        a("s_endpgm")
    def srd(self, d, p, n):
        self.a(f"s_mov_b32 s{d}, s{p}\ns_mov_b32 s{d+1}, s{p+1}\ns_mov_b32 s{d+2}, {n}\ns_mov_b32 s{d+3}, 0x20000")
    def poll(self, vaddr, vtmp, soff="0", x2=False, first_loaded=False):
        a = self.a
        L = a.label("poll"); Dn = a.label("pdone")
        a(f"s_mov_b32 s15, {SPIN}")
        if first_loaded:
            a(f"v_cmp_ne_u32 vcc, {TAG}, v{vtmp}\ns_cbranch_vccz {Dn}")
        a(f"{L}:")
        if x2:
            a(f"""buffer_load_dwordx2 v[{vtmp}:{vtmp+1}], v{vaddr}, {sWS}, {soff} offen sc1
                  s_waitcnt vmcnt(0)
                  v_xor_b32 v{vtmp}, {TAG}, v{vtmp}
                  v_xor_b32 v{vtmp+1}, {TAG}, v{vtmp+1}
                  v_or_b32 v{vtmp}, v{vtmp}, v{vtmp+1}
                  v_cmp_ne_u32 vcc, 0, v{vtmp}""")
        else:
            a(f"""buffer_load_dword v{vtmp}, v{vaddr}, {sWS}, {soff} offen sc1
                  s_waitcnt vmcnt(0)
                  v_cmp_ne_u32 vcc, {TAG}, v{vtmp}""")
        a(f"""s_cbranch_vccz {Dn}
              s_sub_u32 s15, s15, 1
              s_cbranch_scc0 {L}
              {Dn}:""")
        a.vm -= 1
    def flag(self, soff_reg, vtmp):
        self.a(f"""v_mov_b32 v{vtmp}, {TAG}
                   v_mov_b32 v{vtmp+1}, 0
                   s_mov_b64 exec, 1
                   buffer_store_dword v{vtmp}, v{vtmp+1}, {sWS}, {soff_reg} offen sc1
                   s_mov_b64 exec, -1""")
        self.a.vm -= 1

    def prologue(self):
        a = self.a
        a(f"""s_cmp_ge_u32 s2, 512
              s_cbranch_scc1 Lexit
              s_load_dwordx16 s[16:31], s[0:1], 0
              s_load_dwordx16 s[32:47], s[0:1], 64
              v_lshrrev_b32 v2, 6, v0
              v_and_b32 v1, 63, v0
              v_readfirstlane_b32 s3, v2
              s_waitcnt lgkmcnt(0)
              s_load_dword {TAG}, s[46:47], {WS_E}""")
        self.srd(48, 16, 2621440); self.srd(56, 46, (WS_ST + 0x100000) if (self.prof or self.dumpk) else WS_SIZE)
        a("s_cmp_ge_u32 s2, 256\ns_cbranch_scc1 LC")

    def role_g(self):
        a = self.a
        self.srd(52, 36, 1966080); self.srd(60, 42, 2621440); self.srd(68, 40, 1280)
        a(f"""s_and_b32 s5, s2, 7
              s_lshr_b32 s6, s2, 3
              s_and_b32 s7, s6, 3
              s_lshr_b32 s8, s6, 2          ; cb2
              s_lshr_b32 s9, s5, 1
              s_lshl_b32 s9, s9, 2
              s_add_u32 s9, s9, s7          ; rb
              s_and_b32 s10, s5, 1
              s_lshl_b32 s10, s10, 3
              s_add_u32 s10, s10, s8        ; cb
              s_lshl_b32 s11, s5, 2
              s_add_u32 s11, s11, s7        ; rb2
              s_mul_i32 s12, s7, 10
              s_mul_i32 s13, s8, 5
              s_add_u32 s12, s12, s13
              s_lshr_b32 s12, s12, 2
              s_sub_u32 s13, s12, 10
              s_cmp_ge_u32 s12, 10
              s_cselect_b32 s12, s13, s12   ; st0
              s_lshl_b32 s13, s9, 2
              s_add_u32 s13, s13, s3
              s_mul_i32 s74, s13, {32*1280}
              s_add_u32 s75, s74, 1280       ; x wrap
              s_lshl_b32 s13, s12, 7
              s_add_u32 s72, s74, s13        ; x ptr
              s_mul_i32 s76, s10, 192        ; w1 base
              s_add_u32 s77, s76, 1966080
              s_mul_i32 s13, s12, 196608
              s_add_u32 s73, s76, s13        ; w1 ptr
              s_lshl_b32 s78, s3, 12
              s_mul_i32 s79, s3, 3072
              s_add_u32 s79, s79, 32768
              """)
        XO, WO, XR, AR = 40, 44, 48, 52
        a(f"""v_lshrrev_b32 v3, 3, v1
              v_mul_u32_u24 v3, 1280, v3
              v_and_b32 v4, 7, v1
              v_lshrrev_b32 v5, 4, v1
              v_xor_b32 v4, v4, v5
              v_lshl_add_u32 v{XO}, v4, 4, v3
              v_xor_b32 v4, 4, v4
              v_lshl_add_u32 v{XO+1}, v4, 4, v3
              v_add_u32 v{XO+1}, {10240-1024}, v{XO+1}
              v_add_u32 v{XO+2}, {2*(10240-1024)}, v{XO}
              v_add_u32 v{XO+3}, {2*(10240-1024)}, v{XO+1}
              s_mul_i32 s13, s3, 192""")
        for j in range(3):
            a(f"""v_add_u32 v3, s13, v1
                  v_add_u32 v3, {64*j}, v3
                  v_mul_u32_u24 v4, 5462, v3
                  v_lshrrev_b32 v4, 16, v4
                  v_mul_u32_u24 v5, 12, v4
                  v_sub_u32 v5, v3, v5
                  v_mul_u32_u24 v4, 3072, v4
                  v_lshl_add_u32 v{WO+j}, v5, 4, v4""")
            if j: a(f"v_subrev_u32 v{WO+j}, {1024*j}, v{WO+j}")
        GX, GWT = 8, 18
        a(f"""s_lshl_b32 s13, s9, 4
              s_add_u32 s13, s13, s10
              s_lshl_b32 s13, s13, 2
              s_add_u32 s13, s13, s3
              s_lshl_b32 s14, s13, 1
              s_mul_i32 s13, s13, 2560
              v_mul_u32_u24 v3, 40, v1
              v_and_b32 v4, 31, v1
              v_mul_u32_u24 v4, 40, v4
              buffer_load_dwordx4 v[{GX}:{GX+3}], v3, {sX}, s13 offen
              buffer_load_dwordx4 v[{GX+4}:{GX+7}], v3, {sX}, s13 offen offset:16
              buffer_load_dwordx2 v[{GX+8}:{GX+9}], v3, {sX}, s13 offen offset:32
              buffer_load_dwordx2 v[{GWT}:{GWT+1}], v4, {sGW}, 0 offen
              buffer_load_dwordx4 v[{GWT+2}:{GWT+5}], v4, {sGW}, 0 offen offset:8
              buffer_load_dwordx4 v[{GWT+6}:{GWT+9}], v4, {sGW}, 0 offen offset:24""")
        tg = a.vmt()
        tx = {}; tw = {}
        def dma_x(s):
            a(f"s_add_u32 m0, s78, {(s % 2) * 16384}")
            for p in range(4):
                a(f"buffer_load_dwordx4 v{XO+p}, {sX}, s72 offen offset:{1024*p} lds")
            tx[s] = a.vmt()
            a("s_add_u32 s72, s72, 128\ns_cmp_eq_u32 s72, s75\ns_cselect_b32 s72, s74, s72")
        def dma_w(s):
            a(f"s_add_u32 m0, s79, {(s % 4) * 12288}")
            for p in range(3):
                a(f"buffer_load_dwordx4 v{WO+p}, {sW1}, s73 offen offset:{1024*p} lds")
            tw[s] = a.vmt()
            a("s_add_u32 s73, s73, 196608\ns_cmp_eq_u32 s73, s77\ns_cselect_b32 s73, s76, s73")
        dma_x(0); dma_w(0); dma_x(1); dma_w(1); dma_w(2); dma_w(3)
        a(f"""v_and_b32 v3, 31, v1
              v_lshrrev_b32 v4, 1, v3
              v_and_b32 v4, 7, v4
              v_lshrrev_b32 v5, 5, v1
              v_xor_b32 v4, v4, v5
              v_lshlrev_b32 v3, 7, v3
              v_add_u32 v3, s78, v3""")
        for j in range(4):
            a(f"v_xor_b32 v6, {2*j}, v4\nv_lshl_add_u32 v{XR+j}, v6, 4, v3")
        a(f"""v_lshlrev_b32 v3, 3, v5
              v_bfe_u32 v4, v1, 2, 2
              v_add_u32 v3, v3, v4
              v_mul_u32_u24 v3, 192, v3
              v_bfe_u32 v4, v1, 4, 1
              v_lshl_add_u32 v3, v4, 5, v3
              v_and_b32 v4, 3, v1
              v_lshl_add_u32 v3, v4, 3, v3
              v_add_u32 v{AR}, 32768, v3
              v_lshlrev_b32 v2, 4, v1""")
        a(f"""s_mul_i32 s5, s8, 3
              s_lshr_b32 s5, s5, 1
              s_mul_i32 s6, s11, 48
              s_mul_i32 s7, s3, 12
              s_add_u32 s6, s6, s7
              s_lshl_b32 s6, s6, 12
              s_add_u32 s6, s6, {WS_HF}       ; h base
              s_mul_i32 s13, s8, 48
              s_add_u32 s7, s7, s13
              s_mul_i32 s7, s7, 5120
              s_add_u32 s7, s7, {WS_W2F}      ; w2f base""")
        self.stamp(0)
        a.wait(vm=tg)
        a("v_mov_b32 v30, 0\nv_mov_b32 v31, 0\ns_mov_b32 s13, 0xffff0000")
        for i in range(10):
            x, w = GX + i, GWT + i
            a(f"""v_lshlrev_b32 v3, 16, v{x}
                  v_and_b32 v4, s13, v{x}
                  v_lshlrev_b32 v5, 16, v{w}
                  v_and_b32 v6, s13, v{w}
                  v_mul_f32 v3, v3, v5
                  v_mul_f32 v4, v4, v6
                  v_cvt_pk_bf16_f32 v3, v3, v4
                  v_and_b32 v4, s13, v3
                  v_lshlrev_b32 v3, 16, v3
                  v_add_f32 v31, v31, v4
                  v_add_f32 v30, v30, v3""")
        a(f"""v_add_f32 v30, v30, v31
              v_add_f32_dpp v30, v30, v30 row_shr:1 row_mask:0xf bank_mask:0xf bound_ctrl:0
              v_add_f32_dpp v30, v30, v30 row_shr:2 row_mask:0xf bank_mask:0xf bound_ctrl:0
              v_add_f32_dpp v30, v30, v30 row_shr:4 row_mask:0xf bank_mask:0xf bound_ctrl:0
              v_add_f32_dpp v30, v30, v30 row_shr:8 row_mask:0xf bank_mask:0xf bound_ctrl:0
              v_add_f32_dpp v30, v30, v30 row_bcast:15 row_mask:0xa bank_mask:0xf
              v_cvt_pk_bf16_f32 v30, v30, v30
              v_lshlrev_b32 v30, 16, v30
              v_mul_f32 v30, {f32(-LOG2E)}, v30
              v_exp_f32 v30, v30
              v_add_f32 v30, 1.0, v30
              v_rcp_f32 v30, v30
              v_cvt_pk_bf16_f32 v30, v30, v30
              v_lshlrev_b32 v30, 16, v30
              v_and_b32 v3, 31, v1
              v_lshrrev_b32 v4, 5, v1
              v_lshlrev_b32 v4, 2, v4
              v_cmp_eq_u32 vcc, 31, v3
              v_cndmask_b32 v4, -1, v4, vcc
              s_lshl_b32 s14, s14, 2
              s_add_u32 s14, s14, {WS_G}
              buffer_store_dword v30, v4, {sWS}, s14 offen sc1
              s_waitcnt lgkmcnt(0)
              s_add_u32 {TAG}, {TAG}, 1""")
        ACC = 64; XF = (112, 128); AF = (144, 156)
        def rd_x(s):
            for j in range(4):
                r = XF[s % 2] + 4 * j
                a(f"ds_read_b128 v[{r}:{r+3}], v{XR+j} offset:{(s % 2) * 16384}")
            return a.lgt()
        def rd_a(s, j):
            g = (s * 4 + j) % 2
            for ft in range(3):
                for h in range(2):
                    r = AF[g] + 4 * ft + 2 * h
                    a(f"ds_read_b64_tr_b16 v[{r}:{r+1}], v{AR} offset:{(s % 4) * 12288 + (16*j + 4*h) * 192 + 64*ft}")
            return a.lgt()
        a.wait(vm=tw[0]); a("s_barrier")
        self.stamp(1)
        lx = rd_x(0); la = rd_a(0, 0)
        FWV = 56
        for s in range(10):
            for j in range(4):
                g = (s * 4 + j) % 2
                if j == 0:
                    a.wait(lg=lx)
                    if s + 2 < 10: dma_x(s + 2)
                if j < 3:
                    lan = rd_a(s, j + 1)
                    a.wait(lg=la)
                else:
                    a.wait(lg=la)
                    if s < 9:
                        a.wait(vm=max(tx[s + 1], tw[s + 1])); a("s_barrier")
                        if s + 4 < 10: dma_w(s + 4)
                        if s == 7:
                            a(f"""s_mul_i32 s13, s8, 80
                                  s_lshr_b32 s13, s13, 6
                                  s_lshl_b32 s13, s13, 5
                                  s_mul_i32 s14, s3, 6
                                  s_add_u32 s13, s13, s14
                                  s_lshl_b32 s13, s13, 2
                                  v_and_b32 v3, 31, v1
                                  v_min_u32 v3, 5, v3
                                  v_and_b32 v4, 32, v1
                                  v_add_u32 v3, v3, v4
                                  v_lshl_add_u32 v{FWV}, v3, 2, s13
                                  v_add_u32 v{FWV}, {WS_FW}, v{FWV}
                                  buffer_load_dword v{FWV+1}, v{FWV}, {sWS}, 0 offen sc1""")
                            tfw = a.vmt()
                        lx = rd_x(s + 1); lan = rd_a(s + 1, 0)
                for ft in range(3):
                    d = ACC + 16 * ft
                    c = "0" if (s == 0 and j == 0) else f"v[{d}:{d+15}]"
                    af = AF[g] + 4 * ft; xf = XF[s % 2] + 4 * j
                    a(f"v_mfma_f32_32x32x16_bf16 v[{d}:{d+15}], v[{af}:{af+3}], v[{xf}:{xf+3}], {c}")
                la = lan
        self.stamp(2)
        HP = 8
        a(f"""s_lshl_b32 s13, s9, 1
              s_lshr_b32 s14, s3, 1
              s_add_u32 s13, s13, s14
              s_mul_i32 s13, s13, 48
              s_mul_i32 s14, s10, 3
              s_add_u32 s13, s13, s14
              s_lshl_b32 s13, s13, 12
              s_and_b32 s14, s3, 1
              s_lshl_b32 s14, s14, 11
              s_add_u32 s13, s13, s14
              s_add_u32 s13, s13, {WS_HF}
              v_bfe_u32 v3, v1, 4, 1
              v_lshlrev_b32 v3, 10, v3
              v_lshrrev_b32 v4, 5, v1
              v_lshl_add_u32 v3, v4, 9, v3
              v_and_b32 v4, 15, v1
              v_lshl_add_u32 v3, v4, 4, v3""")
        for ft in range(3):
            for c in range(2):
                r = HP + 8 * ft + 4 * c
                for i in range(4):
                    s0 = ACC + 16 * ft + 8 * c + 2 * i
                    a(f"v_cvt_pk_bf16_f32 v{r+i}, v{s0}, v{s0+1}")
                for i in range(4):
                    a(f"v_pk_max_i16 v{r+i}, v{r+i}, 0")
                a(f"buffer_store_dwordx4 v[{r}:{r+3}], v3, {sWS}, s13 offen offset:{256*c} sc1")
            if ft < 2: a("s_add_u32 s13, s13, 4096")
        th = a.vmt()
        a.wait(vm=tfw)
        self.poll(FWV, FWV + 1, first_loaded=True)
        A2 = 176
        free = list(range(32, 176, 4)) + list(range(8, 32, 4))
        a(f"""s_lshl_b32 s13, s5, 12
              s_add_u32 s72, s6, s13         ; h ptr
              s_add_u32 s74, s6, {12*4096}
              s_mul_i32 s13, s5, 5120
              s_add_u32 s73, s7, s13         ; w ptr
              s_add_u32 s75, s7, {12*5120}""")
        Wr = {}; Hr = {}; Wt = {}; Ht = {}
        def ld_w(j, mt):
            r = free.pop(0); Wr[(j, mt)] = r
            if mt == 4: a("s_add_u32 s73, s73, 4096")
            a(f"buffer_load_dwordx4 v[{r}:{r+3}], v2, {sWS}, s73 offen offset:{1024*(mt % 4)} sc1")
            Wt[(j, mt)] = a.vmt()
            if mt == 4: a("s_add_u32 s73, s73, 1024\ns_cmp_eq_u32 s73, s75\ns_cselect_b32 s73, s7, s73")
        def ld_h(j, nt):
            r = free.pop(0); Hr[(j, nt)] = r
            a(f"buffer_load_dwordx4 v[{r}:{r+3}], v2, {sWS}, s72 offen offset:{1024*nt} sc1")
            Ht[(j, nt)] = a.vmt()
            if nt == 3: a("s_add_u32 s72, s72, 4096\ns_cmp_eq_u32 s72, s74\ns_cselect_b32 s72, s6, s72")
        WPRE, HPRE = 6, 3
        for j in range(2):
            for mt in range(5): ld_w(j, mt)
        a.wait(vm=th); a("s_barrier")
        Lnf = a.label("nf")
        a(f"""s_cmp_lg_u32 s3, 0
              s_cbranch_scc1 {Lnf}
              s_lshl_b32 s13, s9, 5
              s_add_u32 s13, s13, s10
              s_lshl_b32 s13, s13, 2
              s_add_u32 s13, s13, {WS_FH}""")
        self.flag("s13", 4)
        a(f"{Lnf}:")
        self.stamp(3)
        for j in range(2, WPRE):
            for mt in range(5): ld_w(j, mt)
        a(f"""s_lshr_b32 s13, s11, 1
              s_lshl_b32 s13, s13, 7
              s_add_u32 s13, s13, {WS_FH}
              v_min_u32 v3, 15, v1
              v_lshlrev_b32 v3, 2, v3""")
        self.poll(3, 4, soff="s13")
        self.stamp(4)
        for j in range(HPRE):
            for nt in range(4): ld_h(j, nt)
        a(f"""s_lshl_b32 s13, s11, 2
              s_add_u32 s13, s13, s3
              s_lshl_b32 s13, s13, 6
              s_add_u32 s13, s13, {WS_G}
              v_and_b32 v3, 15, v1
              v_lshlrev_b32 v3, 2, v3
              buffer_load_dword v7, v3, {sWS}, s13 offen sc1""")
        for j in range(12):
            pend = []
            if j + HPRE < 12: pend += [("h", j + HPRE, nt) for nt in range(4)]
            if j + WPRE < 12: pend += [("w", j + WPRE, mt) for mt in range(5)]
            for mt in range(5):
                a.wait(vm=max(Wt[(j, mt)], Ht[(j, 3)]) if mt == 0 else Wt[(j, mt)])
                for nt in range(4):
                    d = A2 + (nt * 5 + mt) * 4
                    c = "0" if j == 0 else f"v[{d}:{d+3}]"
                    w, h = Wr[(j, mt)], Hr[(j, nt)]
                    a(f"v_mfma_f32_16x16x32_bf16 v[{d}:{d+3}], v[{w}:{w+3}], v[{h}:{h+3}], {c}")
                free.append(Wr[(j, mt)])
                if mt == 4:
                    for nt in range(4): free.append(Hr[(j, nt)])
                while pend and free and (mt < 4 and len(pend) > 4 - mt + 3 or mt == 4 or True):
                    k, jj, x = pend.pop(0)
                    (ld_h if k == "h" else ld_w)(jj, x)
                    if mt < 4: break
            assert not pend
        self.stamp(5)
        a(f"""s_mul_i32 s13, s3, 5120
              v_add_u32 v3, s13, v2""")
        for nt in range(4):
            Ls = a.label("skipw")
            a(f"""s_cmp_eq_u32 s3, {nt}
                  s_cbranch_scc1 {Ls}
                  s_sub_u32 s13, s3, {nt + 1}
                  s_and_b32 s13, s13, 3
                  s_mul_i32 s13, s13, 5120
                  s_add_u32 s13, s13, {nt * 15360}
                  v_add_u32 v3, s13, v2""")
            for mt in range(5):
                d = A2 + (nt * 5 + mt) * 4
                a(f"ds_write_b128 v3, v[{d}:{d+3}] offset:{1024*mt}")
            a(f"{Ls}:")
        OWN = 8
        Lm = a.label("moved")
        for nt in range(4):
            Ln = a.label("mv")
            a(f"s_cmp_lg_u32 s3, {nt}\ns_cbranch_scc1 {Ln}")
            for i in range(20): a(f"v_mov_b32 v{OWN+i}, v{A2 + nt*20 + i}")
            a(f"{Ln}:")
        a(f"""s_mul_i32 s13, s8, 320
              s_add_u32 s13, s13, {WS_FA}
              v_min_u32 v3, 39, v1
              v_lshlrev_b32 v3, 3, v3""")
        self.poll(3, 4, soff="s13", x2=True)
        self.stamp(6)
        ATL = 61440
        a(f"""s_mul_i32 s13, s8, 80
              s_lshl_b32 s14, s3, 3
              s_add_u32 s13, s13, s14
              s_lshl_b32 s13, s13, 12
              s_lshl_b32 s14, s11, 7
              s_add_u32 s13, s13, s14
              s_add_u32 s13, s13, {WS_AT}
              v_lshrrev_b32 v3, 3, v1
              v_lshlrev_b32 v3, 12, v3
              v_and_b32 v4, 7, v1
              v_lshl_add_u32 v3, v4, 4, v3
              s_lshl_b32 s14, s3, 10
              s_add_u32 m0, s14, {ATL}
              s_nop 0
              buffer_load_dwordx4 v3, {sWS}, s13 offen sc1 lds
              s_add_u32 s13, s13, {32*4096}
              s_add_u32 m0, s14, {ATL + 4096}
              s_nop 0
              buffer_load_dwordx4 v3, {sWS}, s13 offen sc1 lds""")
        Lk = a.label("skipd")
        a(f"""s_cmp_ge_u32 s3, 2
              s_cbranch_scc1 {Lk}
              s_add_u32 s13, s13, {32*4096}
              s_add_u32 m0, s14, {ATL + 8192}
              s_nop 0
              buffer_load_dwordx4 v3, {sWS}, s13 offen sc1 lds
              {Lk}:
              s_waitcnt vmcnt(0) lgkmcnt(0)
              s_barrier
              s_mul_i32 s13, s3, 15360
              v_add_u32 v3, s13, v2""")
        RD = 32
        for sl in range(3):
            for mt in range(5):
                r = RD + (sl * 5 + mt) * 4
                a(f"ds_read_b128 v[{r}:{r+3}], v3 offset:{sl*5120 + mt*1024}")
        AA = 96
        a(f"""v_lshrrev_b32 v4, 2, v1
              v_lshlrev_b32 v4, 7, v4
              v_and_b32 v5, 3, v1
              v_lshl_add_u32 v4, v5, 3, v4
              s_lshl_b32 s13, s3, 5
              s_add_u32 s13, s13, {ATL}
              v_add_u32 v4, s13, v4""")
        a("s_waitcnt lgkmcnt(0)")
        for mt in range(5):
            a(f"ds_read_b64_tr_b16 v[{AA+2*mt}:{AA+2*mt+1}], v4 offset:{mt*2048}")
        for sl in range(3):
            for i in range(0, 20, 2):
                r = RD + sl * 20 + i
                a(f"v_pk_add_f32 v[{OWN+i}:{OWN+i+1}], v[{OWN+i}:{OWN+i+1}], v[{r}:{r+1}]")
        a(f"""v_sub_f32 v6, 1.0, v7
              v_cvt_pk_bf16_f32 v6, v6, v6
              v_lshlrev_b32 v6, 16, v6
              s_mov_b32 s13, 0xffff0000
              s_waitcnt lgkmcnt(0)""")
        OP = 112
        for mt in range(5):
            for i in range(2):
                b0 = OWN + 4 * mt + 2 * i; aa = AA + 2 * mt + i
                a(f"""v_cvt_pk_bf16_f32 v32, v{b0}, v{b0+1}
                      v_lshlrev_b32 v34, 16, v{aa}
                      v_and_b32 v35, s13, v{aa}
                      v_and_b32 v33, s13, v32
                      v_lshlrev_b32 v32, 16, v32
                      v_mul_f32 v34, v7, v34
                      v_mul_f32 v35, v7, v35
                      v_mul_f32 v32, v6, v32
                      v_mul_f32 v33, v6, v33
                      v_cvt_pk_bf16_f32 v34, v34, v35
                      v_cvt_pk_bf16_f32 v32, v32, v33
                      v_and_b32 v35, s13, v34
                      v_lshlrev_b32 v34, 16, v34
                      v_and_b32 v33, s13, v32
                      v_lshlrev_b32 v32, 16, v32
                      v_add_f32 v34, v34, v32
                      v_add_f32 v35, v35, v33
                      v_cvt_pk_bf16_f32 v{OP+2*mt+i}, v34, v35""")
        a(f"""s_lshl_b32 s13, s11, 2
              s_add_u32 s13, s13, s3
              s_mul_i32 s13, s13, {16*1280}
              s_mul_i32 s14, s8, 160
              s_add_u32 s13, s13, s14
              v_and_b32 v3, 15, v1
              v_mul_u32_u24 v3, 1280, v3
              v_lshrrev_b32 v5, 4, v1
              v_lshl_add_u32 v4, v5, 3, v3      ; tile4: + 8*g4
              v_bfe_u32 v5, v1, 4, 1
              v_lshl_add_u32 v3, v5, 5, v3
              v_lshrrev_b32 v5, 5, v1
              v_lshl_add_u32 v3, v5, 4, v3""")
        for pr in range(2):
            p = OP + 4 * pr
            a(f"v_permlane16_swap_b32 v{p}, v{p+2}\nv_permlane16_swap_b32 v{p+1}, v{p+3}")
        for pr in range(2):
            p = OP + 4 * pr
            a(f"buffer_store_dwordx4 v[{p}:{p+3}], v3, {sOUT}, s13 offen offset:{64*pr}")
        a(f"buffer_store_dwordx2 v[{OP+8}:{OP+9}], v4, {sOUT}, s13 offen offset:128")
        self.end(7)

    def role_c(self):
        a = self.a
        a(f"""LC:
              s_sub_u32 s5, s2, 256          ; q
              s_cmp_eq_u32 s3, 3
              s_cbranch_scc1 LH3
              s_mul_i32 s6, s5, 3
              s_lshl_b32 s7, s5, 1
              s_add_u32 s7, s7, 128
              s_cmp_lt_u32 s5, 128
              s_cselect_b32 s6, s6, s7
              s_cselect_b32 s7, 3, 2
              s_cmp_ge_u32 s3, s7
              s_cbranch_scc1 LH2
              s_add_u32 s6, s6, s3           ; channel
              s_mul_i32 s8, s3, 21248""")
        P = 8
        for i in range(20): a(f"v_mov_b32 v{P+i}, 0")
        a(f"""s_mul_i32 s9, s6, 384
              v_lshl_add_u32 v2, v1, 1, s9
              s_lshl_b32 s10, s6, 1
              v_mov_b32 v3, s10""")
        a(f"global_load_short_d16_hi v{P+18}, v3, s[30:31]")
        for k in range(6):
            for g in range(3):
                a(f"global_load_short_d16_hi v{P+3*k+g}, v2, s[{18+2*k}:{19+2*k}] offset:{128*g}")
        a(f"global_load_short_d16_hi v{P+19}, v3, s[32:33]")
        KX = 0; CP = 4608
        VW, VF = 4, 5
        a(f"""s_add_u32 s9, s8, {CP}
              v_lshl_add_u32 v{VW}, v1, 2, s9
              v_and_b32 v6, 15, v1
              v_mul_u32_u24 v6, 800, v6
              v_lshrrev_b32 v7, 4, v1
              v_lshl_add_u32 v6, v7, 4, v6
              v_add_u32 v{VF}, s9, v6
              v_mov_b32 v28, 0
              v_mov_b32 v29, 0
              v_mov_b32 v30, 0
              v_mov_b32 v31, 0
              v_min_u32 v6, 29, v1
              v_lshl_add_u32 v6, v6, 4, s8
              s_waitcnt lgkmcnt(0)
              s_add_u32 {TAG}, {TAG}, 1
              ds_write_b128 v6, v[28:31]""")
        self.stamp(0)
        a("s_waitcnt vmcnt(0)")
        self.stamp(1)
        DT = P + 18; DSK = P + 19
        Lhi = struct.unpack("<f", struct.pack("<f", LOG2E))[0]; Llo = LOG2E - Lhi
        a(f"""s_mov_b32 s11, {f32(Lhi)}
              v_mul_f32 v6, s11, v{DT}
              v_fma_f32 v7, v{DT}, s11, -v6
              v_fmac_f32 v7, {f32(Llo)}, v{DT}
              v_exp_f32 v6, v6
              v_mul_f32 v7, {f32(0.6931471805599453)}, v7
              v_fmac_f32 v6, v6, v7
              v_cvt_pk_bf16_f32 v6, v6, v6
              v_lshlrev_b32 v{DT}, 16, v6""")
        A2, W = P, P + 3
        for g in range(3):
            a(f"""v_mul_f32 v{A2+g}, v{DT}, v{A2+g}
                  v_mul_f32 v{W+g}, v{DT}, v{W+g}
                  v_mul_f32 v{P+6+g}, v{DT}, v{P+6+g}
                  v_mul_f32 v{P+9+g}, v{DT}, v{P+9+g}""")
        for g in range(3):
            a(f"v_mul_f32 v{A2+g}, s11, v{A2+g}\nv_mul_f32 v{W+g}, 0.15915494309189535, v{W+g}")
        nxt = [32]
        def alloc():
            r = nxt[0]; nxt[0] += 6; assert nxt[0] <= 176; return r
        TMP = alloc(); PK = 28
        def pr(r, g): return f"v[{r+2*g}:{r+2*g+1}]"
        def cmul(z, p, q, conj=False):
            for g in range(3):
                a(f"v_pk_mul_f32 {pr(TMP,g)}, {pr(p,g)}, {pr(q,g)} op_sel:[0,0] op_sel_hi:[1,0]")
            ng = "neg_hi:[1,0,0]" if conj else "neg_lo:[1,0,0]"
            for g in range(3):
                a(f"v_pk_fma_f32 {pr(z,g)}, {pr(p,g)}, {pr(q,g)}, {pr(TMP,g)} op_sel:[1,1,0] op_sel_hi:[0,1,1] {ng}")
        def put(z, vec, keep=None):
            pk = keep if keep is not None else PK
            for g in range(3):
                a(f"v_cvt_pk_bf16_f32 v{pk+g}, v{z+2*g}, v{z+2*g+1}")
            putp(pk, vec)
        def putp(pk, vec):
            for g in range(3):
                a(f"ds_write_b32 v{VW}, v{pk+g} offset:{vec*800 + 256*g}")
        def direct(z, l):
            lit = "1.0" if l == 1 else f32(float(l))
            for g in range(3):
                a(f"v_mul_f32 v{TMP+2*g}, {lit}, v{W+g}\nv_mul_f32 v{TMP+2*g+1}, {lit}, v{A2+g}")
            for g in range(3):
                a(f"v_fract_f32 v{TMP+2*g}, v{TMP+2*g}\nv_exp_f32 v{TMP+2*g+1}, v{TMP+2*g+1}")
            for g in range(3):
                a(f"v_cos_f32 v{z+2*g}, v{TMP+2*g}\nv_sin_f32 v{z+2*g+1}, v{TMP+2*g}")
            for g in range(3):
                a(f"v_pk_mul_f32 {pr(z,g)}, {pr(z,g)}, {pr(TMP,g)} op_sel:[0,1] op_sel_hi:[1,1]")
        def frags(base):
            for ks in range(12):
                a(f"ds_read_b128 v[{base+4*ks}:{base+4*ks+3}], v{VF} offset:{64*ks}")
            return a.lgt()
        E16 = alloc(); Z0 = alloc(); Z1 = alloc()
        for g in range(3):
            bre, bim, cre, cim = P + 6 + g, P + 9 + g, P + 12 + g, P + 15 + g
            a(f"""v_mul_f32 v{Z0+2*g}, v{cre}, v{bre}
                  v_mul_f32 v{Z0+2*g+1}, v{cre}, v{bim}
                  v_fma_f32 v{Z0+2*g}, -v{cim}, v{bim}, v{Z0+2*g}
                  v_fma_f32 v{Z0+2*g+1}, -v{cim}, v{bre}, -v{Z0+2*g+1}""")
        direct(E16, 16)
        put(Z0, 0)
        cur, oth = Z0, Z1
        for r in range(1, 16):
            cmul(oth, cur, E16, conj=True); put(oth, r); cur, oth = oth, cur
        CF = 176; RF = 128
        DK = 224
        tcf = frags(CF)
        def mm(t, trf):
            a.wait(lg=trf)
            d = DK + 4 * t
            for ks in range(12):
                c = "0" if ks == 0 else f"v[{d}:{d+3}]"
                a(f"v_mfma_f32_16x16x32_bf16 v[{d}:{d+3}], v[{RF+4*ks}:{RF+4*ks+3}], v[{CF+4*ks}:{CF+4*ks+3}], {c}")
        E1 = alloc(); E2 = alloc(); E4 = alloc(); E8 = alloc(); E12 = alloc()
        a(f"v_mov_b32 v6, 0x3f80")
        for g in range(3): a(f"ds_write_b32 v{VW}, v6 offset:{256*g}")
        direct(E1, 1); put(E1, 1)
        cur = E1; named = {2: E2, 4: E4, 8: E8, 12: E12}
        tog = [Z0, Z1]
        for k in range(2, 16):
            z = named.get(k) or (Z0 if cur != Z0 else Z1)
            cmul(z, cur, E1); put(z, k); cur = z
        t0 = frags(RF)
        E256 = alloc(); E512 = alloc(); E768 = alloc(); E272 = alloc()
        K264 = 224 + 12
        direct(E256, 256)
        mm(0, t0)
        put(E256, 0)
        cur = E256
        for i in range(1, 8):
            z = Z0 if cur != Z0 else Z1
            cmul(z, cur, E2); put(z, i, keep=(K264 if i == 4 else None)); cur = z
        cmul(E272, cur, E2)
        cmul(E512, E256, E256); put(E512, 8)
        cmul(E768, E512, E256); put(E768, 12)
        for b, row in ((E512, 8), (E768, 12)):
            for i, e in enumerate((E4, E8, E12)):
                z = Z0 if i % 2 == 0 else Z1
                cmul(z, b, e); put(z, row + 1 + i)
        t1 = frags(RF)
        Eb = E1
        cmul(Eb, E512, E512)
        cmul(E2, E768, E768)
        mm(1, t1)
        putp(K264, 0); put(E272, 4)
        cmul(Z0, E512, E16); put(Z0, 8)
        cmul(Z1, E768, E16); put(Z1, 12)
        cmul(E4, Eb, E256)
        cmul(E12, E2, E256)
        for b, row in ((Eb, 1), (E4, 5), (E2, 9), (E12, 13)):
            put(b, row)
            cmul(Z0, b, E8); put(Z0, row + 1)
            cmul(Z1, b, E16); put(Z1, row + 2)
        t2 = frags(RF)
        a(f"""s_lshr_b32 s9, s6, 6
              s_lshl_b32 s9, s9, 7
              s_add_u32 s9, s9, {WS_FU}
              v_min_u32 v6, 15, v1
              v_lshlrev_b32 v6, 2, v6""")
        mm(2, t2)
        self.stamp(2)
        self.poll(6, 7, soff="s9")
        self.stamp(3)
        UW = 32
        a(f"""s_lshl_b32 s9, s6, 12
              s_add_u32 s9, s9, {WS_UT}
              v_lshlrev_b32 v2, 4, v1""")
        for p in range(4):
            a(f"buffer_load_dwordx4 v[{UW+4*p}:{UW+4*p+3}], v2, {sWS}, s9 offen offset:{1024*p} sc1")
        X = 64
        d0, d1, d2 = DK, DK + 4, DK + 8
        a(f"""v_and_b32 v6, 15, v1
              v_lshrrev_b32 v7, 4, v1
              v_lshl_add_u32 v6, v6, 5, s8           ; Kx + 32 r
              v_lshl_add_u32 v3, v7, 3, v6           ; seg0 (+480)
              v_lshl_add_u32 v4, v7, 4, v6
              v_lshl_add_u32 v5, v7, 9, v6
              v_cvt_pk_bf16_f32 v{X}, v{d0}, v{d0+1}
              v_cvt_pk_bf16_f32 v{X+1}, v{d0+2}, v{d0+3}
              ds_write_b64 v3, v[{X}:{X+1}] offset:480""")
        A_ = [d1, d1 + 1, d1 + 2, d1 + 3, d2]; B_ = [d2 + 1, d2 + 2, d2 + 3]
        def cv(r, pairs, src):
            for i, (lo, hi) in enumerate(pairs):
                a(f"v_cvt_pk_bf16_f32 v{r+i}, v{src[lo]}, v{src[hi]}")
        cv(X + 4, [(0,0),(0,0),(0,1),(1,1),(1,1),(1,1),(2,2),(2,2)], B_)
        a(f"ds_write_b128 v5, v[{X+4}:{X+7}] offset:2528\nds_write_b128 v5, v[{X+8}:{X+11}] offset:2544")
        cv(X + 12, [(0,0),(1,2),(2,2),(3,4)], A_)
        cv(X + 16, [(0,0),(0,1),(1,1),(2,2),(2,2),(2,3),(3,3),(4,4)], A_)
        a(f"""s_mov_b32 exec_hi, 0
              ds_write_b128 v4, v[{X+12}:{X+15}] offset:992
              s_not_b64 exec, exec
              ds_write_b128 v5, v[{X+16}:{X+19}] offset:480
              ds_write_b128 v5, v[{X+20}:{X+23}] offset:496
              s_mov_b64 exec, -1""")
        a(f"""v_and_b32 v6, 3, v1
              v_mul_u32_u24 v6, 4160, v6
              v_bfe_u32 v7, v1, 2, 1
              v_lshl_add_u32 v6, v7, 4, v6
              s_add_u32 s9, s8, {CP}
              v_add_u32 v6, s9, v6
              v_mov_b32 v28, 0
              v_mov_b32 v29, 0
              v_mov_b32 v30, 0
              v_mov_b32 v31, 0
              ds_write_b128 v6, v[28:31]
              v_add_u32 v2, s9, v2""")
        if self.dumpk:
            a(f"""s_waitcnt lgkmcnt(0)
                  v_lshl_add_u32 v6, v1, 4, s8
                  s_mul_i32 s10, s6, 4608
                  s_add_u32 s10, s10, {WS_K}
                  v_lshlrev_b32 v7, 4, v1""")
            for p in range(5):
                a(f"ds_read_b128 v[96:99], v6 offset:{1024*p}\ns_waitcnt lgkmcnt(0)")
                if p == 4: a("s_mov_b32 exec_hi, 0")
                a(f"buffer_store_dwordx4 v[96:99], v7, {sWS}, s10 offen\ns_add_u32 s10, s10, 1024\ns_waitcnt vmcnt(0)")
            a("s_mov_b64 exec, -1")
        a("s_waitcnt vmcnt(0)")
        self.stamp(4)
        DPP = "row_mask:0xf bank_mask:0xf"
        for p in range(4):
            w = UW + 4 * p; T = 96 + 16 * (p % 2)
            if p == 0:
                a(f"v_mov_b32 v{T}, 0\nv_mov_b32 v{T+12}, 0")
            else:
                a(f"v_mov_b32_dpp v{T}, v{w-1} wave_ror:1 {DPP}\nv_mov_b32_dpp v{T+12}, v{w-2} wave_ror:1 {DPP}")
            a(f"ds_write_b128 v2, v[{w}:{w+3}] offset:{32 + 1024*p}")
            a(f"v_mov_b32_dpp v{T}, v{w+3} wave_shr:1 {DPP}\nv_mov_b32_dpp v{T+12}, v{w+2} wave_shr:1 {DPP}")
            for i in range(3): a(f"v_mov_b32 v{T+1+i}, v{w+i}")
            for i in range(4):
                a(f"v_alignbit_b32 v{T+4+i}, v{w+i}, v{T+i}, 16")
            a(f"v_alignbit_b32 v{T+8}, v{T}, v{T+12}, 16")
            for i in range(1, 4):
                a(f"v_alignbit_b32 v{T+8+i}, v{T+i}, v{T+i-1}, 16")
            a(f"""ds_write_b128 v2, v[{T+4}:{T+7}] offset:{4160 + 32 + 1024*p}
                  ds_write_b128 v2, v[{T}:{T+3}] offset:{2*4160 + 32 + 1024*p}
                  ds_write_b128 v2, v[{T+8}:{T+11}] offset:{3*4160 + 32 + 1024*p}""")
        a(f"""v_bfe_u32 v6, v1, 2, 2
              v_mul_u32_u24 v6, 4160, v6
              v_and_b32 v7, 3, v1
              v_lshl_add_u32 v6, v7, 3, v6
              v_lshrrev_b32 v7, 4, v1
              v_lshlrev_b32 v7, 4, v7
              v_sub_u32 v6, v6, v7
              s_add_u32 s10, s9, 32
              v_add_u32 v3, s10, v6""")
        ACC = 32; AS = (64, 96); BS = (128, 160)
        def reads(q):
            L = []
            g = q % 2
            for k in range(8):
                L.append(f"ds_read_b128 v[{BS[g]+4*k}:{BS[g]+4*k+3}], v4 offset:{64*(8*k+q)}")
                for h in range(2):
                    r = AS[g] + 4 * k + 2 * h
                    L.append(f"ds_read_b64_tr_b16 v[{r}:{r+1}], v3 offset:{512*k + 480 - 64*q - 8*h}")
            return L
        for t in reads(0): a(t)
        tq = a.lgt()
        for q in range(8):
            g = q % 2
            nx = reads(q + 1) if q < 7 else []
            a.wait(lg=tq)
            for r in range(8):
                for m in range(8 - r):
                    d = ACC + 4 * (m + r)
                    c = "0" if (q == 0 and r == 0) else f"v[{d}:{d+3}]"
                    a(f"v_mfma_f32_16x16x32_bf16 v[{d}:{d+3}], v[{AS[g]+4*m}:{AS[g]+4*m+3}], v[{BS[g]+4*r}:{BS[g]+4*r+3}], {c}")
                    if nx: a(nx.pop(0))
            tq = a.lgt()
        self.stamp(5)
        a(f"""v_and_b32 v6, 15, v1
              v_lshrrev_b32 v7, 4, v1
              v_lshl_add_u32 v5, v6, 5, s10
              v_lshl_add_u32 v5, v7, 3, v5""")
        UU = 64
        for n in range(8): a(f"ds_read_b64 v[{UU+2*n}:{UU+2*n+1}], v5 offset:{512*n}")
        a(f"""s_mov_b32 s13, 0xffff0000
              v_lshlrev_b32 v6, 5, v6
              v_bfe_u32 v7, v1, 4, 1
              v_lshl_add_u32 v6, v7, 9, v6
              v_lshrrev_b32 v7, 5, v1
              v_lshl_add_u32 v6, v7, 4, v6
              s_lshl_b32 s9, s6, 12
              s_add_u32 s9, s9, {WS_AT}
              s_waitcnt lgkmcnt(0)""")
        O = 96
        for n in range(8):
            for i in range(2):
                y = ACC + 4 * n + 2 * i; u = UU + 2 * n + i
                a(f"""v_cvt_pk_bf16_f32 v8, v{y}, v{y+1}
                      v_lshlrev_b32 v10, 16, v{u}
                      v_and_b32 v11, s13, v{u}
                      v_mul_f32 v10, v{DSK}, v10
                      v_mul_f32 v11, v{DSK}, v11
                      v_and_b32 v9, s13, v8
                      v_cvt_pk_bf16_f32 v10, v10, v11
                      v_lshlrev_b32 v8, 16, v8
                      v_and_b32 v11, s13, v10
                      v_lshlrev_b32 v10, 16, v10
                      v_add_f32 v9, v9, v11
                      v_add_f32 v8, v8, v10
                      v_cvt_pk_bf16_f32 v{O+2*n+i}, v8, v9""")
            if n % 2 == 1:
                p = O + 2 * (n - 1)
                a(f"v_permlane16_swap_b32 v{p}, v{p+2}\nv_permlane16_swap_b32 v{p+1}, v{p+3}")
                a(f"buffer_store_dwordx4 v[{p}:{p+3}], v6, {sWS}, s9 offen offset:{512*(n-1)} sc1")
        a(f"""s_lshl_b32 s9, s6, 2
              s_add_u32 s9, s9, {WS_FA}
              s_waitcnt vmcnt(0)""")
        self.flag("s9", 8)
        self.end(6)

    def helpers(self):
        a = self.a
        ST = 63744
        a(f"""LH2:
              s_cmp_ge_u32 s5, 176
              s_cbranch_scc1 Lexit
              s_sub_u32 s6, s5, 128          ; 0..47
              s_cmp_ge_u32 s6, 24
              s_cselect_b32 s7, 9, 8         ; db
              s_cselect_b32 s8, 24, 0
              s_sub_u32 s6, s6, s8           ; fb
              s_mov_b32 s9, 1                ; units
              s_mov_b32 s10, {2*21248}
              s_branch LW2
              LH3:
              s_mov_b32 s10, {ST}
              s_cmp_lt_u32 s5, 160
              s_cbranch_scc1 LUT
              s_sub_u32 s6, s5, 160          ; 0..95
              s_mul_i32 s7, s6, 43
              s_lshr_b32 s7, s7, 9           ; db = /12
              s_mul_i32 s8, s7, 12
              s_sub_u32 s6, s6, s8
              s_lshl_b32 s6, s6, 1           ; fb
              s_mov_b32 s9, 2
              LW2:""")
        self.srd(64, 38, 1966080)
        a(f"""v_lshrrev_b32 v2, 3, v1
              v_mul_u32_u24 v2, 1280, v2
              v_and_b32 v3, 7, v1
              v_lshl_add_u32 v2, v3, 4, v2
              s_mul_i32 s11, s6, {64*1280}
              s_lshl_b32 s12, s7, 7
              s_add_u32 s11, s11, s12""")
        for p in range(16):
            if p == 8: a("s_cmp_eq_u32 s9, 1\ns_cbranch_scc1 LW2a")
            a(f"""s_add_u32 m0, s10, {1024*p}
                  s_nop 0
                  buffer_load_dwordx4 v2, {sW2}, s11 offen lds
                  s_add_u32 s11, s11, {8*1280}""")
        a(f"""LW2a:
              v_bfe_u32 v3, v1, 4, 1
              v_lshlrev_b32 v3, 4, v3
              v_lshrrev_b32 v4, 5, v1
              v_lshl_add_u32 v3, v4, 2, v3
              v_bfe_u32 v4, v1, 2, 2
              v_add_u32 v3, v3, v4
              v_lshlrev_b32 v3, 7, v3
              v_and_b32 v4, 3, v1
              v_lshl_add_u32 v3, v4, 3, v3
              v_add_u32 v3, s10, v3
              v_lshlrev_b32 v2, 4, v1
              s_waitcnt lgkmcnt(0)
              s_add_u32 {TAG}, {TAG}, 1""")
        for dt in range(4):
            a(f"""s_lshl_b32 s12, s7, 2
                  s_add_u32 s12, s12, {dt}
                  s_mul_i32 s13, s12, 205
                  s_lshr_b32 s13, s13, 10
                  s_mul_i32 s14, s13, 235
                  s_add_u32 s12, s12, s14
                  s_mul_i32 s14, s6, 10
                  s_add_u32 s12, s12, s14
                  s_lshl_b32 s12, s12, 10
                  s_add_u32 s{72+dt}, s12, {WS_W2F}""")
        a("s_waitcnt vmcnt(0)")
        self.stamp(0)
        a("LW2loop:")
        for kk in range(2):
            for dt in range(4):
                r = 8 + 4 * (kk * 4 + dt)
                for h in range(2):
                    a(f"ds_read_b64_tr_b16 v[{r+2*h}:{r+2*h+1}], v3 offset:{(32*kk + 8*h)*128 + 32*dt}")
            if kk == 0: t0 = a.lgt()
        for kk in range(2):
            if kk == 0: a.wait(lg=t0)
            else: a("s_waitcnt lgkmcnt(0)")
            for dt in range(4):
                r = 8 + 4 * (kk * 4 + dt)
                a(f"buffer_store_dwordx4 v[{r}:{r+3}], v2, {sWS}, s{72+dt} offen sc1\ns_add_u32 s{72+dt}, s{72+dt}, 5120")
        a(f"""s_lshl_b32 s12, s7, 5
              s_add_u32 s12, s12, s6
              s_lshl_b32 s12, s12, 2
              s_add_u32 s12, s12, {WS_FW}
              s_waitcnt vmcnt(0)""")
        self.flag("s12", 4)
        a(f"""s_add_u32 s6, s6, 1
              v_add_u32 v3, 8192, v3
              s_sub_u32 s9, s9, 1
              s_cmp_lg_u32 s9, 0
              s_cbranch_scc1 LW2loop""")
        Le = a.label("noupd")
        a(f"""s_cmp_lg_u32 s5, 255
              s_cbranch_scc1 {Le}""")
        a("v_and_b32 v2, 15, v1\nv_lshrrev_b32 v3, 4, v1\nv_lshlrev_b32 v2, 2, v2\nv_lshl_add_u32 v2, v3, 7, v2")
        for i in range(4):
            a(f"s_mov_b32 s12, {WS_FH + 512*i}"); self.poll(2, 4, soff="s12")
        a("v_and_b32 v2, 31, v1\nv_min_u32 v2, 23, v2\nv_and_b32 v3, 32, v1\nv_add_u32 v2, v2, v3\nv_lshlrev_b32 v2, 2, v2")
        for i in range(5):
            a(f"s_mov_b32 s12, {WS_FW + 256*i}"); self.poll(2, 4, soff="s12")
        a("v_lshlrev_b32 v2, 3, v1")
        for i in range(5):
            a(f"s_mov_b32 s12, {WS_FA + 512*i}"); self.poll(2, 4, soff="s12", x2=True)
        a(f"s_mov_b32 s12, {WS_E}")
        self.flag("s12", 4)
        a(f"{Le}:")
        self.end(1)
        a(f"""LUT:
              s_and_b32 s6, s5, 7
              s_lshr_b32 s7, s5, 3
              s_and_b32 s8, s6, 1
              s_mul_i32 s8, s8, 20
              s_add_u32 s7, s7, s8           ; idx
              s_lshr_b32 s6, s6, 1
              s_lshl_b32 s6, s6, 2
              s_and_b32 s8, s7, 3
              s_add_u32 s6, s6, s8           ; tb
              s_lshr_b32 s7, s7, 2           ; db
              v_lshrrev_b32 v2, 3, v1
              v_mul_u32_u24 v2, 1280, v2
              v_and_b32 v3, 7, v1
              v_bfe_u32 v4, v1, 4, 1
              v_lshlrev_b32 v4, 1, v4
              v_xor_b32 v3, v3, v4
              v_lshl_add_u32 v5, v3, 4, v2     ; even p
              v_xor_b32 v3, 4, v3
              v_lshl_add_u32 v6, v3, 4, v2     ; odd p
              s_mul_i32 s11, s6, {128*1280}
              s_lshl_b32 s12, s7, 7
              s_add_u32 s11, s11, s12""")
        for p in range(16):
            a(f"""s_add_u32 m0, s10, {1024*p}
                  s_nop 0
                  buffer_load_dwordx4 v{5 + p % 2}, {sX}, s11 offen lds
                  s_add_u32 s11, s11, {8*1280}""")
        a(f"""v_lshrrev_b32 v2, 4, v1
              v_lshlrev_b32 v2, 3, v2
              v_bfe_u32 v3, v1, 2, 2
              v_add_u32 v2, v2, v3
              v_lshlrev_b32 v2, 7, v2
              v_and_b32 v3, 3, v1
              v_lshl_add_u32 v2, v3, 3, v2
              v_add_u32 v2, s10, v2
              v_bfe_u32 v3, v1, 3, 2""")
        for dt in range(4):
            a(f"v_xor_b32 v4, {dt}, v3\nv_lshl_add_u32 v{8+dt}, v4, 5, v2")
        a(f"""v_and_b32 v2, 15, v1
              v_lshlrev_b32 v2, 12, v2
              v_lshrrev_b32 v3, 4, v1
              v_lshl_add_u32 v2, v3, 4, v2
              s_lshl_b32 s11, s7, 18
              s_lshl_b32 s12, s6, 8
              s_add_u32 s11, s11, s12
              s_add_u32 s11, s11, {WS_UT}
              s_waitcnt lgkmcnt(0)
              s_add_u32 {TAG}, {TAG}, 1
              s_waitcnt vmcnt(0)""")
        self.stamp(0)
        tk = []
        def rdu(dt):
            for tc in range(4):
                r = 16 + 16 * dt + 4 * tc
                for h in range(2):
                    a(f"ds_read_b64_tr_b16 v[{r+2*h}:{r+2*h+1}], v{8+dt} offset:{(32*tc + 4*h)*128}")
            tk.append(a.lgt())
        rdu(0)
        for dt in range(4):
            if dt < 3: rdu(dt + 1)
            a.wait(lg=tk[dt])
            for tc in range(4):
                r = 16 + 16 * dt + 4 * tc
                a(f"buffer_store_dwordx4 v[{r}:{r+3}], v2, {sWS}, s11 offen offset:{64*tc} sc1")
            a(f"s_add_u32 s11, s11, {16*4096}")
        a(f"""s_lshl_b32 s12, s7, 5
              s_add_u32 s12, s12, s6
              s_lshl_b32 s12, s12, 2
              s_add_u32 s12, s12, {WS_FU}
              s_waitcnt vmcnt(0)""")
        self.flag("s12", 4)
        self.end(1)
        a("Lexit:\ns_endpgm")

    def build(self):
        self.prologue(); self.role_g(); self.role_c(); self.helpers()
        body = self.a.finish()
        hdr = open("cdna_kernels/" + NAME + ".s.ref").read().split("; Override launch")[0]
        return hdr + f"""; @launch grid=(512,1,1) block=(256,1,1) lds=81920
.amdgcn_target "amdgcn-amd-amdhsa--gfx950"
.text
.globl {KN}
.p2align 8
.type {KN},@function
{KN}:
{body}.section .rodata,"a"
.p2align 6
.amdhsa_kernel {KN}
  .amdhsa_next_free_vgpr 256
  .amdhsa_next_free_sgpr 102
  .amdhsa_accum_offset 256
  .amdhsa_group_segment_fixed_size 0
  .amdhsa_kernarg_size 128
  .amdhsa_user_sgpr_count 2
  .amdhsa_user_sgpr_kernarg_segment_ptr 1
  .amdhsa_system_sgpr_workgroup_id_x 1
  .amdhsa_float_denorm_mode_32 3
.end_amdhsa_kernel
"""

if __name__ == "__main__":
    out = sys.argv[1] if len(sys.argv) > 1 else "cdna_kernels/" + NAME + ".s"
    prof = "prof" in sys.argv; dumpk = "dumpk" in sys.argv
    open(out, "w").write(Gen(prof, dumpk).build())
    print("wrote", out)
```

```python
import re

TRANS = ("v_exp_f32", "v_log_f32", "v_rcp_f32", "v_rsq_f32", "v_sqrt_f32", "v_sin_f32", "v_cos_f32")

def regs_of(tok):
    tok = tok.strip()
    m = re.fullmatch(r"-?\|?([vs])(\d+)\|?", tok)
    if m: return {(m.group(1), int(m.group(2)))}
    m = re.fullmatch(r"-?([vs])\[(\d+):(\d+)\]", tok)
    if m: return {(m.group(1), i) for i in range(int(m.group(2)), int(m.group(3)) + 1)}
    if tok == "vcc": return {("s", 106), ("s", 107)}
    if tok == "exec": return {("s", 126), ("s", 127)}
    if tok == "m0": return {("s", 124)}
    return set()

class Ins:
    def __init__(self, text):
        self.text = text
        t = text.split(";")[0].strip()
        self.op = t.split()[0] if t else ""
        rest = t[len(self.op):].strip()
        ops = [o.strip() for o in re.split(r",(?![^\[]*\])", rest)] if rest else []
        self.mods = ""
        if ops:
            parts = ops[-1].split(None, 1)
            ops[-1] = parts[0]
            self.mods = parts[1] if len(parts) > 1 else ""
        self.ops = ops
        op = self.op
        self.cls = "other"; self.dst = set(); self.src = set(); self.passes = 0
        self.srcC = set(); self.srcAB = set(); self.stdata = set()
        R = [regs_of(o) for o in ops]
        U = lambda L: set().union(*L) if L else set()
        if op.startswith("v_mfma"):
            self.cls = "mfma"; self.dst = R[0]; self.srcAB = R[1] | R[2]; self.srcC = R[3]; self.src = self.srcAB | self.srcC
            self.passes = 8 if "32x32" in op else 4
        elif op.startswith("v_"):
            self.cls = "valu"
            if op.startswith("v_permlane") and "swap" in op:
                self.dst = R[0] | R[1]; self.src = R[0] | R[1]
            elif op.startswith("v_cmp"):
                self.dst = R[0]; self.src = U(R[1:])
            elif op == "v_nop":
                pass
            else:
                self.dst = R[0]; self.src = U(R[1:])
                if op.startswith(("v_fmac", "v_dot2c", "v_writelane")) or "_dpp" in op or "d16" in op: self.src |= R[0]
                if op.startswith("v_cndmask") and len(ops) == 3: self.src |= regs_of("vcc")
            self.dpp = ("_dpp" in op) or ("row_" in self.mods) or ("wave_" in self.mods) or ("quad_perm" in self.mods)
        elif op.startswith("ds_"):
            self.cls = "ds"
            if op.startswith("ds_read"): self.dst = R[0]; self.src = U(R[1:])
            else: self.src = U(R)
            self.lds = "addtid" in op
        elif op.startswith(("buffer_", "global_")):
            self.cls = "vmem"
            lds = " lds" in (" " + self.mods)
            self.lds = lds
            if "_load" in op and not lds:
                self.dst = R[0]; self.src = U(R[1:])
                if "d16" in op: self.src |= R[0]
            elif "_store" in op:
                self.src = U(R)
                d = R[0] if op.startswith("buffer_") else R[1]
                if len(d) >= 3: self.stdata = d
            else:
                self.src = U(R)
        elif op.startswith("s_"):
            self.cls = "salu"
            if op.startswith(("s_load", "s_buffer_load", "s_memtime", "s_memrealtime")):
                self.cls = "smem"; self.dst = R[0]; self.src = U(R[1:])
            elif op.startswith(("s_cmp", "s_cbranch", "s_branch", "s_waitcnt", "s_nop", "s_barrier", "s_endpgm", "s_setprio", "s_sleep", "s_bitcmp")):
                self.src = U(R)
            else:
                self.dst = R[0]; self.src = U(R[1:])
                if "saveexec" in op: self.dst |= regs_of("exec")
    def states(self):
        if self.op == "s_nop": return int(self.ops[0]) + 1
        return 1

def V(x): return {r for r in x if r[0] == "v"}
def S(x): return {r for r in x if r[0] == "s"}

def need(prev, cur):
    n = 0
    pv = prev.cls == "valu"
    if pv and cur.cls == "mfma" and V(prev.dst) & cur.src: n = max(n, 2)
    if prev.cls == "mfma":
        big = 12 if prev.passes == 8 else 8
        if cur.cls == "valu" and prev.dst & (cur.src | cur.dst): n = max(n, big)
        if cur.cls in ("ds", "vmem") and prev.dst & (cur.src | cur.dst): n = max(n, big)
        if cur.cls == "mfma":
            if prev.dst & cur.srcAB: n = max(n, big)
            if prev.dst & cur.srcC and not (prev.dst == cur.srcC and prev.passes == cur.passes): n = max(n, big - 2)
            if prev.dst & cur.dst and not (prev.dst == cur.srcC): n = max(n, big)
        if cur.cls == "valu" and prev.srcC & cur.dst: n = max(n, 7 if prev.passes == 8 else 3)
    if pv and prev.op.replace("_e32", "").replace("_e64", "") in TRANS and cur.cls in ("valu",) and V(prev.dst) & cur.src: n = max(n, 1)
    if pv and cur.cls == "valu":
        if (getattr(cur, "dpp", False) or cur.op.startswith("v_permlane")) and V(prev.dst) & cur.src: n = max(n, 2)
        if cur.op.startswith(("v_readlane", "v_readfirstlane")) and V(prev.dst) & cur.src: n = max(n, 1)
        if S(prev.dst) & cur.src: n = max(n, 4 if cur.op.startswith(("v_readlane", "v_writelane")) else 2)
        if prev.op.startswith("v_dot") and V(prev.dst) & (cur.src | cur.dst) and prev.op != cur.op: n = max(n, 3)
    if pv and cur.cls == "vmem" and S(prev.dst) & cur.src: n = max(n, 5)
    if prev.cls == "salu" and ("s", 124) in prev.dst and cur.cls in ("vmem", "ds") and getattr(cur, "lds", False): n = max(n, 1)
    if prev.stdata and prev.stdata & cur.dst: n = max(n, 2 if cur.cls == "valu" else 1)
    return n

class Asm:
    def __init__(self):
        self.lines = []
        self.vm = 0; self.lg = 0
        self.uid = 0
    def e(self, text):
        for t in text.strip().split("\n"):
            t = t.strip()
            if not t or t.startswith(";"): continue
            if t.endswith(":"):
                self.lines.append(t); continue
            i = Ins(t)
            self.lines.append(i)
            i.cond = "cond" in t.split(";")[-1] if ";" in t else False
            if i.cls == "vmem" and not i.cond: self.vm += 1
            if i.cls == "ds": self.lg += 1
        return self
    __call__ = e
    def vmt(self): return self.vm
    def lgt(self): return self.lg
    def wait(self, vm=None, lg=None):
        s = []
        if vm is not None:
            n = self.vm - vm; assert 0 <= n, n
            s.append(f"vmcnt({min(n, 63)})")
        if lg is not None:
            n = self.lg - lg; assert n >= 0
            s.append(f"lgkmcnt({min(n, 15)})")
        if s: self.e("s_waitcnt " + " ".join(s))
    def label(self, base):
        self.uid += 1
        return f"L{base}_{self.uid}"
    def finish(self, check=True):
        out = []; hist = []
        vmq = []; lgq = []
        for ln in self.lines:
            if isinstance(ln, str):
                out.append(ln); continue
            req = 0; dist = 0
            for p in reversed(hist):
                r = need(p, ln) - dist
                if r > req: req = r
                dist += p.states()
                if dist > 24: break
            while req > 0:
                k = min(req, 8)
                nop = Ins(f"s_nop {k-1}"); out.append("    " + nop.text); hist.append(nop); req -= k
            if check:
                if ln.op == "s_waitcnt":
                    m = re.search(r"vmcnt\((\d+)\)", ln.text)
                    if m and getattr(ln, "cond", False):
                        while vmq and vmq[-1][3]: vmq.pop()
                    elif m:
                        n = int(m.group(1)); k = len(vmq); c = 0
                        while k > 0 and not (c == n and (not vmq[k-1][3] or True) and (c == n)):
                            if not vmq[k-1][3]: c += 1
                            k -= 1
                        vmq = vmq[k:]
                    m = re.search(r"lgkmcnt\((\d+)\)", ln.text)
                    if m:
                        n = int(m.group(1))
                        if any(x[1] == "smem" for x in lgq) and n != 0:
                            raise AssertionError("counted lgkm wait with smem outstanding: " + ln.text)
                        lgq = lgq[len(lgq) - n:] if n < len(lgq) else lgq
                        if n == 0: lgq = []
                else:
                    touched = ln.src | ln.dst
                    for q in (vmq, lgq):
                        for (d, c, t, _) in q:
                            if d & touched and not ("d16" in ln.op and ln.cls == "vmem"):
                                raise AssertionError(f"use of pending load result: '{ln.text}' vs '{t}'")
                    if ln.cls == "vmem": vmq.append((ln.dst, "vmem", ln.text, getattr(ln, "cond", False)))
                    if ln.cls in ("ds", "smem"): lgq.append((ln.dst, ln.cls, ln.text, False))
                    if ln.op in ("s_endpgm", "s_branch"): vmq = []; lgq = []
            out.append("    " + ln.text); hist.append(ln)
        return "\n".join(out) + "\n"
```

```python
import sys, struct
sys.path.insert(0, "work")
from asmgen import Asm

NAME = "gated_mix__ssm_conv_s4__dense_activation_relu__prompt"
KN = NAME + "_kernel"
WS_E = 0; WS_FH = 0x1000; WS_FW = 0x2000; WS_FU = 0x3000; WS_FA = 0x4000; WS_G = 0x10000
WS_W2F = 0x100000; WS_UT = 0x300000; WS_AT = 0x600000; WS_HF = 0x900000; WS_SIZE = 0x1000000
WS_K = 0x1000000
WS_ST = 0x2000000
SPIN = 20000
def f32(x): return "0x%08x" % struct.unpack("<I", struct.pack("<f", x))[0]
LOG2E = 1.4426950408889634

sX, sW1, sWS, sOUT = "s[48:51]", "s[52:55]", "s[56:59]", "s[60:63]"
sW2 = "s[52:55]"; sGW = "s[64:67]"
TAG = "s4"
WSP = "s[96:97]"
DPP = "row_mask:0xf bank_mask:0xf"
VSTR = 12768; CPB = 3 * VSTR; CSTR = 12480; CPY = 4160; KXO = 4160

class Gen:
    def __init__(self, prof=False, dumpk=False, opts=()):
        self.fi = 0; self.a = Asm(); self.prof = prof; self.dumpk = dumpk; self.opts = set(opts)
        self.par = dict(o.split("=") for o in opts if "=" in o)
    def P(self, k, d): return int(self.par.get(k, d))
    def stamp(self, grp="c"):
        if not self.prof: return
        if grp != "*" and self.par.get("sg", "c") not in grp: return
        i = self.fi; self.fi += 1
        assert i < 16
        op = "s_memtime" if "cyc" in self.opts else "s_memrealtime"
        self.a(f"{op} s[98:99]\ns_waitcnt lgkmcnt(0)\ns_mov_b32 s{80+i}, s98")
    def end(self):
        a = self.a
        if self.prof:
            self.stamp("*")
            n = self.fi - 1
            self.fi = 0
            a(f"""s_lshl_b32 s5, s2, 2
                  s_add_u32 s5, s5, s3
                  s_lshl_b32 s5, s5, 7
                  s_add_u32 s5, s5, {WS_ST}
                  v_mov_b32 v2, s5""")
            for i in range(n + 1):
                a(f"v_mov_b32 v3, s{80+i}\nglobal_store_dword v2, v3, {WSP} offset:{4*i}")
            a(f"""v_mov_b32 v3, s100
                  global_store_dword v2, v3, {WSP} offset:72
                  v_mov_b32 v3, s101
                  global_store_dword v2, v3, {WSP} offset:68
                  v_mov_b32 v3, {n + 1}
                  global_store_dword v2, v3, {WSP} offset:64""")
        a("s_endpgm")
    def srd(self, d, p, n):
        self.a(f"s_mov_b32 s{d}, s{p}\ns_mov_b32 s{d+1}, s{p+1}\ns_mov_b32 s{d+2}, {n}\ns_mov_b32 s{d+3}, 0x20000")
    def kwait(self):
        a = self.a
        a("s_waitcnt lgkmcnt(0)")
        if self.prof: a("s_memrealtime s[98:99]\ns_waitcnt lgkmcnt(0)\ns_mov_b32 s101, s98")
    def wssrd(self):
        self.srd(56, 46, (WS_ST + 0x100000) if (self.prof or self.dumpk) else WS_SIZE)
        self.a(f"s_mov_b32 s96, s46\ns_mov_b32 s97, s47\ns_load_dword {TAG}, s[46:47], {WS_E}")
    def chk(self, vt, w):
        a = self.a
        if w == 1:
            a(f"v_cmp_ne_u32 vcc, {TAG}, v{vt}"); return
        for i in range(w): a(f"v_xor_b32 v{vt+i}, {TAG}, v{vt+i}")
        if w == 2: a(f"v_or_b32 v{vt}, v{vt}, v{vt+1}")
        else: a(f"v_or_b32 v{vt}, v{vt}, v{vt+1}\nv_or3_b32 v{vt}, v{vt}, v{vt+2}, v{vt+3}")
        a(f"v_cmp_ne_u32 vcc, 0, v{vt}")
    def pload(self, vaddr, vt, soff, w, cond=True):
        sfx = {1: "dword", 2: "dwordx2", 4: "dwordx4"}[w]
        r = f"v{vt}" if w == 1 else f"v[{vt}:{vt+w-1}]"
        self.a(f"buffer_load_{sfx} {r}, v{vaddr}, {sWS}, {soff} offen sc1" + (" ; cond" if cond else ""))
    def poll(self, vaddr, vt, soff="0", w=1, first_loaded=False, sleep=0):
        a = self.a
        L = a.label("poll"); Dn = a.label("pdone")
        if first_loaded:
            self.chk(vt, w); a(f"s_cbranch_vccz {Dn}")
        a(f"s_mov_b32 s15, {SPIN}\n{L}:")
        if sleep: a(f"s_sleep {sleep}")
        self.pload(vaddr, vt, soff, w)
        a("s_waitcnt vmcnt(0) ; cond")
        self.chk(vt, w)
        a(f"""s_cbranch_vccz {Dn}
              s_sub_u32 s15, s15, 1
              s_cbranch_scc0 {L}
              {Dn}:""")
    def spoll(self, srcs, base=16, sleep=0):
        a = self.a
        Lp = a.label("sp"); Ld = a.label("sd")
        a(f"s_mov_b32 s15, {SPIN}\n{Lp}:")
        r = base
        for (so, imm, n) in srcs:
            a(f"s_load_dwordx{n} s[{r}:{r+n-1}], {WSP}, {so} " + (f"offset:{imm} " if imm else "") + "glc")
            r += n
        a("s_waitcnt lgkmcnt(0)")
        for i in range(base, r): a(f"s_xor_b32 s{i}, s{i}, {TAG}")
        for i in range(base + 2, r, 2): a(f"s_or_b64 s[{base}:{base+1}], s[{base}:{base+1}], s[{i}:{i+1}]")
        a(f"s_cbranch_scc0 {Ld}")
        if sleep: a(f"s_sleep {sleep}")
        a(f"""s_sub_u32 s15, s15, 1
              s_cbranch_scc0 {Lp}
              {Ld}:""")
    def flag(self, soff_reg, vt, lanes=1):
        self.a(f"""v_mov_b32 v{vt}, {TAG}
                   v_lshlrev_b32 v{vt+1}, 2, v1
                   s_mov_b64 exec, {(1 << lanes) - 1}
                   buffer_store_dword v{vt}, v{vt+1}, {sWS}, {soff_reg} offen sc1 ; cond
                   s_mov_b64 exec, -1""")

    def prologue(self):
        a = self.a
        if self.prof: a("s_memrealtime s[100:101]")
        a(f"""s_cmp_ge_u32 s2, 512
              s_cbranch_scc1 Lexit
              s_load_dwordx16 s[16:31], s[0:1], 0
              s_load_dwordx16 s[32:47], s[0:1], 64
              v_lshrrev_b32 v2, 6, v0
              v_and_b32 v1, 63, v0
              v_readfirstlane_b32 s3, v2""")
        if "cpf" in self.opts:
            a(f"""s_lshr_b32 s5, s2, 3
                  s_cmp_ge_u32 s5, {self.P('cpf_n', 7)}
                  s_cbranch_scc1 Lnopf
                  s_cmp_lg_u32 s3, 0
                  s_cbranch_scc1 Lnopf
                  s_getpc_b64 s[6:7]
                  s_lshl_b32 s5, s5, 13
                  v_lshlrev_b32 v2, 7, v1
                  v_add_u32 v2, s5, v2
                  global_load_dword v255, v2, s[6:7] ; cond
                  Lnopf:""")
        a(("s_cmp_ge_u32" if "gfirst" in self.opts else "s_cmp_lt_u32") + " s2, 256\ns_cbranch_scc1 " + ("Lexit" if "noC" in self.opts else "LC"))
        if "noG" in self.opts: a("s_branch Lexit")

    def role_g(self):
        a = self.a
        noC = "noC" in self.opts
        if self.P("gprio", 0): a(f"s_setprio {self.P('gprio', 0)}")
        a(f"""s_and_b32 s5, s2, 7
              s_bfe_u32 s6, s2, 0x50003
              s_and_b32 s7, s6, 3
              s_lshr_b32 s8, s6, 2          ; cb2 = j
              s_lshr_b32 s9, s5, 1
              s_lshl_b32 s9, s9, 2
              s_add_u32 s9, s9, s7          ; rb
              s_and_b32 s13, s5, 1
              s_lshl_b32 s10, s13, 3
              s_add_u32 s10, s10, s8        ; cb
              s_lshl_b32 s11, s5, 2
              s_add_u32 s11, s11, s7        ; rb2
              """)
        stag = self.P("stag", 0)
        if stag == 0:
            a("""s_mul_i32 s12, s7, 5
              s_add_u32 s12, s12, 1
              s_lshr_b32 s12, s12, 1
              s_mul_i32 s13, s13, 5
              s_add_u32 s12, s12, s13
              s_add_u32 s12, s12, s8
              s_sub_u32 s13, s12, 10
              s_cmp_ge_u32 s12, 10
              s_cselect_b32 s12, s13, s12
              s_sub_u32 s13, s12, 10
              s_cmp_ge_u32 s12, 10
              s_cselect_b32 s12, s13, s12""")
        elif stag == 1:
            a("""s_mul_i32 s12, s13, 5
              s_add_u32 s12, s12, s8
              s_sub_u32 s13, s12, 10
              s_cmp_ge_u32 s12, 10
              s_cselect_b32 s12, s13, s12""")
        else:
            a("""s_mul_i32 s12, s13, 5
              s_sub_u32 s13, s8, 5
              s_cmp_ge_u32 s8, 5
              s_cselect_b32 s13, s13, s8
              s_add_u32 s12, s12, s13""")
        a(f"""
              s_lshl_b32 s13, s9, 2
              s_add_u32 s13, s13, s3
              s_mul_i32 s74, s13, {32*1280}
              s_add_u32 s75, s74, 1280       ; x wrap
              s_lshl_b32 s13, s12, 7
              s_add_u32 s72, s74, s13        ; x ptr
              s_mul_i32 s76, s10, 192        ; w1 base
              s_add_u32 s77, s76, 1966080
              s_mul_i32 s13, s12, 196608
              s_add_u32 s73, s76, s13        ; w1 ptr
              s_lshl_b32 s78, s3, 12
              s_mul_i32 s79, s3, 3072
              s_add_u32 s79, s79, 32768
              """)
        XO, WO, XR, AR = 140, 144, 147, 151
        a(f"""v_lshrrev_b32 v3, 3, v1
              v_mul_u32_u24 v3, 1280, v3
              v_and_b32 v4, 7, v1
              v_lshrrev_b32 v5, 4, v1
              v_xor_b32 v4, v4, v5
              v_lshl_add_u32 v{XO}, v4, 4, v3
              v_xor_b32 v4, 4, v4
              v_lshl_add_u32 v{XO+1}, v4, 4, v3
              v_add_u32 v{XO+1}, {10240-1024}, v{XO+1}
              v_add_u32 v{XO+2}, {2*(10240-1024)}, v{XO}
              v_add_u32 v{XO+3}, {2*(10240-1024)}, v{XO+1}
              s_mul_i32 s13, s3, 192""")
        for j in range(3):
            a(f"""v_add_u32 v3, s13, v1
                  v_add_u32 v3, {64*j}, v3
                  v_mul_u32_u24 v4, 5462, v3
                  v_lshrrev_b32 v4, 16, v4
                  v_mul_u32_u24 v5, 12, v4
                  v_sub_u32 v5, v3, v5
                  v_mul_u32_u24 v4, 3072, v4
                  v_lshl_add_u32 v{WO+j}, v5, 4, v4""")
            if j: a(f"v_subrev_u32 v{WO+j}, {1024*j}, v{WO+j}")
        a(f"""v_and_b32 v3, 31, v1
              v_lshrrev_b32 v4, 1, v3
              v_and_b32 v4, 7, v4
              v_lshrrev_b32 v5, 5, v1
              v_xor_b32 v4, v4, v5
              v_lshlrev_b32 v3, 7, v3
              v_add_u32 v3, s78, v3""")
        for j in range(4):
            a(f"v_xor_b32 v6, {2*j}, v4\nv_lshl_add_u32 v{XR+j}, v6, 4, v3")
        self.kwait()
        self.srd(48, 16, 2621440); self.srd(52, 36, 1966080)
        tx = {}; tw = {}
        pol = self.par.get("pol", "")
        def dma_x(s):
            if "nodx" in self.opts and s >= 2:
                tx[s] = a.vmt(); return []
            L = [f"s_add_u32 m0, s78, {(s % 2) * 16384}\nbuffer_load_dwordx4 v{XO}, {sX}, s72 offen {pol} lds"]
            for p in range(1, 4):
                L.append(f"buffer_load_dwordx4 v{XO+p}, {sX}, s72 offen offset:{1024*p} {pol} lds")
            def last():
                a(L[3]); tx[s] = a.vmt()
                a("s_add_u32 s72, s72, 128\ns_cmp_eq_u32 s72, s75\ns_cselect_b32 s72, s74, s72")
            return L[:3] + [last]
        def dma_w(s):
            if "nodw" in self.opts and s >= 2:
                tw[s] = a.vmt(); return []
            L = [f"s_add_u32 m0, s79, {(s % 4) * 12288}\nbuffer_load_dwordx4 v{WO}, {sW1}, s73 offen {pol} lds"]
            for p in range(1, 3):
                L.append(f"buffer_load_dwordx4 v{WO+p}, {sW1}, s73 offen offset:{1024*p} {pol} lds")
            def last():
                a(L[2]); tw[s] = a.vmt()
                a("s_add_u32 s73, s73, 196608\ns_cmp_eq_u32 s73, s77\ns_cselect_b32 s73, s76, s73")
            return L[:2] + [last]
        def run(items):
            for it in items:
                if callable(it): it()
                else: a(it)
        run(dma_x(0)); run(dma_w(0))
        self.wssrd(); self.srd(60, 42, 2621440); self.srd(64, 40, 1280)
        a(f"""v_lshrrev_b32 v5, 5, v1
              v_lshlrev_b32 v3, 3, v5
              v_bfe_u32 v4, v1, 2, 2
              v_add_u32 v3, v3, v4
              v_mul_u32_u24 v3, 192, v3
              v_bfe_u32 v4, v1, 4, 1
              v_lshl_add_u32 v3, v4, 5, v3
              v_and_b32 v4, 3, v1
              v_lshl_add_u32 v3, v4, 3, v3
              v_add_u32 v{AR}, 32768, v3
              v_lshlrev_b32 v2, 4, v1""")
        a(f"""s_mul_i32 s70, s8, 3
              s_lshr_b32 s70, s70, 1
              s_mul_i32 s13, s7, {self.P("roti", 3)}
              s_add_u32 s70, s70, s13
              s_sub_u32 s13, s70, 12
              s_cmp_ge_u32 s70, 12
              s_cselect_b32 s70, s13, s70
              s_mul_i32 s6, s11, 48
              s_mul_i32 s7, s3, 12
              s_add_u32 s6, s6, s7
              s_lshl_b32 s6, s6, 12
              s_add_u32 s68, s6, {WS_HF}
              s_mul_i32 s13, s8, 48
              s_add_u32 s7, s7, s13
              s_mul_i32 s7, s7, 5120
              s_add_u32 s69, s7, {WS_W2F}
              s_mul_i32 s5, s70, 5120         ; r0 * 5120""")
        GX, GWT, GA0 = 8, 18, 38
        a(f"""s_lshl_b32 s13, s9, 2
              s_add_u32 s13, s13, s3
              s_lshl_b32 s13, s13, 4
              s_add_u32 s13, s13, s10
              s_lshl_b32 s14, s13, 3
              s_add_u32 s71, s14, {WS_G}
              s_mul_i32 s6, s13, 2560
              v_mul_u32_u24 v{GA0}, 40, v1
              v_and_b32 v4, 31, v1
              v_mul_u32_u24 v{GA0+1}, 40, v4""")
        gl = [f"buffer_load_dwordx4 v[{GX}:{GX+3}], v{GA0}, {sX}, s6 offen",
              f"buffer_load_dwordx4 v[{GX+4}:{GX+7}], v{GA0}, {sX}, s6 offen offset:16",
              f"buffer_load_dwordx2 v[{GX+8}:{GX+9}], v{GA0}, {sX}, s6 offen offset:32",
              f"buffer_load_dwordx2 v[{GWT}:{GWT+1}], v{GA0+1}, {sGW}, 0 offen",
              f"buffer_load_dwordx4 v[{GWT+2}:{GWT+5}], v{GA0+1}, {sGW}, 0 offen offset:8",
              f"buffer_load_dwordx4 v[{GWT+6}:{GWT+9}], v{GA0+1}, {sGW}, 0 offen offset:24"]
        UD, UA = 40, 56
        a(f"""v_lshrrev_b32 v3, 4, v1
              v_lshlrev_b32 v3, 3, v3
              v_bfe_u32 v4, v1, 2, 2
              v_add_u32 v3, v3, v4
              v_lshlrev_b32 v3, 7, v3         ; row*128
              v_add_u32 v3, s78, v3
              v_and_b32 v4, 1, v1
              v_lshl_add_u32 v3, v4, 3, v3    ; + 8*half
              v_bfe_u32 v4, v1, 1, 1
              v_bfe_u32 v5, v1, 3, 1
              v_xor_b32 v4, v4, v5
              v_lshl_add_u32 v3, v4, 4, v3    ; + 16*b
              v_bfe_u32 v4, v1, 4, 1
              v_lshl_add_u32 v{UA}, v4, 6, v3
              v_xor_b32 v4, 1, v4
              v_lshl_add_u32 v{UA+1}, v4, 6, v3
              v_and_b32 v3, 15, v1
              v_lshlrev_b32 v3, 12, v3
              v_lshrrev_b32 v4, 4, v1
              v_lshl_add_u32 v{UA+2}, v4, 4, v3
              s_lshl_b32 s13, s12, 18
              s_lshl_b32 s14, s9, 8
              s_add_u32 s13, s13, s14
              s_lshl_b32 s14, s3, 6
              s_add_u32 s13, s13, s14
              s_add_u32 s13, s13, {WS_UT}""")
        self.stamp("1")
        run(dma_x(1))
        ACC = 176; XF = (224, 240); AF = 152
        def rd_x(s):
            for j in range(4):
                r = XF[s % 2] + 4 * j
                a(f"ds_read_b128 v[{r}:{r+3}], v{XR+j} offset:{(s % 2) * 16384}")
            return a.lgt()
        def rd_a1(s, j, ft, slot):
            for h in range(0 if ("nord" in self.opts and 1 <= s <= 8) else 2):
                r = AF + 4 * slot + 2 * h
                a(f"ds_read_b64_tr_b16 v[{r}:{r+1}], v{AR} offset:{(s % 4) * 12288 + (16*j + 4*h) * 192 + 64*ft}")
            return a.lgt()
        def rd_a(s, j):
            g = (s * 4 + j) % 2
            for ft in range(3): t = rd_a1(s, j, ft, 3 * g + ft)
            return t
        a.wait(vm=tx[0])
        self.stamp("c1")
        Lnu = a.label("nou")
        a(f"s_cmp_ge_u32 s8, 5\ns_cbranch_scc1 {Lnu}")
        for dt in range(4):
            for h in range(2):
                X = (2 * dt) ^ (2 * h)
                r = UD + 4 * dt + 2 * h
                a(f"ds_read_b64_tr_b16 v[{r}:{r+1}], v{UA + (X >> 2)} offset:{(X & 2) * 16 + h * 512}")
        a("s_waitcnt lgkmcnt(0)")
        for dt in range(4):
            r = UD + 4 * dt
            a(f"buffer_store_dwordx4 v[{r}:{r+3}], v{UA+2}, {sWS}, s13 offen sc1 ; cond")
            if dt < 3: a("s_add_u32 s13, s13, 65536")
        a(f"{Lnu}:\ns_waitcnt lgkmcnt(0)\ns_add_u32 {TAG}, {TAG}, 1")
        lx = rd_x(0)
        run(dma_w(1))
        gate = ["v_mov_b32 v36, 0", "v_mov_b32 v37, 0", "s_mov_b32 s6, 0xffff0000"]
        for i in range(0, 10, 2):
            for k in range(2):
                x, w, t = GX + i + k, GWT + i + k, 28 + 4 * k
                gate += [f"v_lshlrev_b32 v{t}, 16, v{x}", f"v_and_b32 v{t+1}, s6, v{x}",
                         f"v_lshlrev_b32 v{t+2}, 16, v{w}", f"v_and_b32 v{t+3}, s6, v{w}"]
            for k in range(2):
                t = 28 + 4 * k
                gate += [f"v_mul_f32 v{t}, v{t}, v{t+2}", f"v_mul_f32 v{t+1}, v{t+1}, v{t+3}"]
            for k in range(2):
                t = 28 + 4 * k
                gate += [f"v_cvt_pk_bf16_f32 v{t}, 0, v{t}", f"v_cvt_pk_bf16_f32 v{t+1}, 0, v{t+1}"]
            for k in range(2):
                t = 28 + 4 * k
                gate += [f"v_add_f32 v36, v36, v{t}", f"v_add_f32 v37, v37, v{t+1}"]
        nop = None
        gate += ["v_add_f32 v36, v36, v37", "v_and_b32 v28, 31, v1", "v_lshrrev_b32 v29, 5, v1",
                 "v_add_f32_dpp v36, v36, v36 row_shr:1 row_mask:0xf bank_mask:0xf bound_ctrl:0",
                 "v_lshlrev_b32 v29, 2, v29", "v_cmp_eq_u32 vcc, 31, v28",
                 "v_add_f32_dpp v36, v36, v36 row_shr:2 row_mask:0xf bank_mask:0xf bound_ctrl:0",
                 "v_cndmask_b32 v29, -1, v29, vcc", nop,
                 "v_add_f32_dpp v36, v36, v36 row_shr:4 row_mask:0xf bank_mask:0xf bound_ctrl:0",
                 nop, nop,
                 "v_add_f32_dpp v36, v36, v36 row_shr:8 row_mask:0xf bank_mask:0xf bound_ctrl:0",
                 nop, nop,
                 "v_add_f32_dpp v36, v36, v36 row_bcast:15 row_mask:0xa bank_mask:0xf",
                 "v_cvt_pk_bf16_f32 v36, 0, v36",
                 f"v_mul_f32 v36, {f32(-LOG2E)}, v36",
                 "v_exp_f32 v36, v36", nop, nop,
                 "v_add_f32 v36, 1.0, v36",
                 "v_rcp_f32 v36, v36", nop, nop,
                 "v_cvt_pk_bf16_f32 v36, 0, v36",
                 f"buffer_store_dword v36, v29, {sWS}, s71 offen sc1"]
        RP = [0, 1, 6, 7, 8, 9]; LP = [2, 3, 4, 5]; SP = [10, 11]
        Wr = {}; Wt = {}; Hr = {}; Ht = {}; Wl = {}
        def woff(p, d):
            return f"""s_add_u32 {d}, s5, {p * 5120}
                       s_cmp_ge_u32 {d}, 61440
                       s_cselect_b32 s15, 61440, 0
                       s_sub_u32 {d}, {d}, s15
                       s_add_u32 {d}, {d}, s69"""
        def ld_w(p, mt, r, sreg):
            def f():
                if mt == 0: a(woff(p, sreg))
                if mt == 4: a(f"s_add_u32 {sreg}, {sreg}, 4096")
                Wr[(p, mt)] = r
                a(f"buffer_load_dwordx4 v[{r}:{r+3}], v2, {sWS}, {sreg} offen offset:{1024*(mt % 4)} sc1")
                Wt[(p, mt)] = a.vmt()
            return f
        wpre = [ld_w(p, mt, 8 + 4 * (5 * k + mt), "s14") for k, p in enumerate(RP) for mt in range(5)]
        a.wait(vm=tw[0]); a("s_barrier")
        self.stamp("c1d")
        la = rd_a(0, 0)
        FWV = 60
        S_W0 = self.P("sw0", 7)
        G0, GN = self.P("g0", 3), self.P("gn", 3)
        BAR = self.P("bar", 6)
        HPK = (128, 136, 144)
        def pack(ft):
            L = []
            for c in range(2):
                r = HPK[ft] + 4 * c
                for i in range(4):
                    s0 = ACC + 16 * ft + 8 * c + 2 * i
                    L.append(f"v_cvt_pk_bf16_f32 v{r+i}, v{s0}, v{s0+1}")
                for i in range(4): L.append(f"v_pk_max_i16 v{r+i}, v{r+i}, 0")
                L.append(f"buffer_store_dwordx4 v[{r}:{r+3}], v3, {sWS}, s13 offen offset:{256*c} sc1")
            if ft < 2: L.append("s_add_u32 s13, s13, 4096")
            return L
        tg = None
        def sync_point(s):
            nonlocal lx, tfw
            if 3 <= s <= 6: self.stamp("3")
            a.wait(vm=max(tx[s + 1], tw[s + 1]))
            if 3 <= s <= 6: self.stamp("3")
            a("s_barrier")
            self.stamp("1" + ("3" if 3 <= s <= 6 else "") + ("d" if s in (0, 8) else ""))
            lx = rd_x(s + 1)
            if s == 0:
                Lf = a.label("nf")
                a(f"""s_cmp_ge_u32 s8, 5
                      s_cbranch_scc1 {Lf}
                      s_cmp_lg_u32 s3, 0
                      s_cbranch_scc1 {Lf}
                      s_lshl_b32 s13, s12, 4
                      s_add_u32 s13, s13, s9
                      s_lshl_b32 s13, s13, 2
                      s_add_u32 s13, s13, {WS_FU}""")
                self.flag("s13", 40)
                a(f"{Lf}:")
            if s == S_W0 - 2:
                a(f"""s_mul_i32 s14, s8, 80
                      s_lshr_b32 s14, s14, 6
                      s_lshl_b32 s14, s14, 5
                      s_mul_i32 s15, s3, 6
                      s_add_u32 s14, s14, s15
                      s_lshl_b32 s14, s14, 2
                      v_and_b32 v3, 31, v1
                      v_min_u32 v3, 5, v3
                      v_and_b32 v4, 32, v1
                      v_add_u32 v3, v3, v4
                      v_lshl_add_u32 v{FWV}, v3, 2, s14
                      v_add_u32 v{FWV}, {WS_FW}, v{FWV}""")
                self.pload(FWV, FWV + 1, "0", 1, cond=False)
                tfw = a.vmt()
            if s == S_W0 - 1:
                a.wait(vm=tfw)
                if not noC: self.poll(FWV, FWV + 1, first_loaded=True)
        tfw = None
        ex = dma_w(2)
        for s in range(9):
            for j in range(4):
                g = (s * 4 + j) % 2
                if j == 0:
                    a.wait(lg=lx)
                    if s + 2 < 10: ex += dma_x(s + 2)
                    if s == 0: ex += gl[:5] + [lambda: (a(gl[5]), None)[1]]
                if j < 3: lan = rd_a(s, j + 1)
                elif s < 8: lan = rd_a(s + 1, 0)
                else:
                    g9 = 3 * (g ^ 1)
                    l9 = {}
                    for idx in range(3): l9[idx] = rd_a1(9, idx, 0, (g9 + idx) % 6)
                a.wait(lg=la)
                for ft in range(3):
                    d = ACC + 16 * ft
                    c = "0" if (s == 0 and j == 0) else f"v[{d}:{d+15}]"
                    af = AF + 12 * g + 4 * ft; xf = XF[s % 2] + 4 * j
                    a(f"v_mfma_f32_32x32x16_bf16 v[{d}:{d+15}], v[{af}:{af+3}], v[{xf}:{xf+3}], {c}")
                    if 3 * j + ft + 1 == BAR:
                        sync_point(s)
                        if s + 3 < 10: ex += dma_w(s + 3)
                    elif ex: run([ex.pop(0)])
                    elif s >= S_W0 and wpre:
                        assert not gate
                        run([wpre.pop(0)])
                    if "nogate" in self.opts: gate = []
                    if s >= G0 and gate:
                        run([x for x in gate[:GN] if x]); gate = gate[GN:]
                la = lan
        assert not gate and not ex
        a(f"""s_lshl_b32 s13, s9, 1
              s_lshr_b32 s6, s3, 1
              s_add_u32 s13, s13, s6
              s_lshl_b32 s7, s13, 5          ; rb2' * 32
              s_mul_i32 s13, s13, 48
              s_mul_i32 s6, s10, 3
              s_add_u32 s13, s13, s6
              s_lshl_b32 s13, s13, 12
              s_and_b32 s6, s3, 1
              s_add_u32 s7, s7, s6
              s_lshl_b32 s6, s6, 11
              s_add_u32 s13, s13, s6
              s_add_u32 s13, s13, {WS_HF}
              s_lshl_b32 s6, s10, 1
              s_add_u32 s7, s7, s6
              s_lshl_b32 s7, s7, 2
              s_add_u32 s7, s7, {WS_FH}
              v_bfe_u32 v3, v1, 4, 1
              v_lshlrev_b32 v3, 10, v3
              v_lshrrev_b32 v4, 5, v1
              v_lshl_add_u32 v3, v4, 9, v3
              v_and_b32 v4, 15, v1
              v_lshl_add_u32 v3, v4, 4, v3""")
        a.wait(lg=lx)
        fill = []
        for idx in range(12):
            ft, j = idx // 4, idx % 4
            if idx + 3 < 12: l9[idx + 3] = rd_a1(9, (idx + 3) % 4, (idx + 3) // 4, (g9 + idx + 3) % 6)
            a.wait(lg=l9[idx])
            if idx == 11: a("s_barrier")
            d = ACC + 16 * ft; af = AF + 4 * ((g9 + idx) % 6); xf = XF[1] + 4 * j
            a(f"v_mfma_f32_32x32x16_bf16 v[{d}:{d+15}], v[{af}:{af+3}], v[{xf}:{xf+3}], v[{d}:{d+15}]")
            if idx == 5: fill += pack(0)
            if idx == 9: fill += pack(1)
            if wpre and not fill: run([wpre.pop(0)])
            run(fill[:5]); fill = fill[5:]
        self.stamp("d")
        run(fill); run(wpre)
        self.stamp("c1d")
        run(pack(2))
        th = a.vmt()
        dl = []
        for k, p in enumerate(LP):
            for mt in range(5):
                def f(k=k, p=p, mt=mt):
                    if mt == 0:
                        a(woff(p, "s14"))
                        if k < 3: a(f"s_mul_i32 s6, s3, 15360\ns_add_u32 m0, s6, {5120 * k}")
                        else: a(f"s_mul_i32 s6, s3, 5120\ns_add_u32 m0, s6, 61440")
                    if mt == 4: a(f"s_add_u32 s14, s14, 4096\ns_add_u32 m0, m0, 4096")
                    a(f"buffer_load_dwordx4 v2, {sWS}, s14 offen offset:{1024*(mt % 4)} sc1 lds")
                    Wl[(p, mt)] = a.vmt()
                dl.append(f)
        nb = self.P("dl_before", 10)
        run(dl[:nb])
        a.wait(vm=th)
        self.flag("s7", 4)
        self.stamp("c1d")
        run(dl[nb:])
        for i in range(4):
            a(f"""s_add_u32 s6, s3, {i + 1}
                  s_and_b32 s6, s6, 3
                  s_lshl_b32 s6, s6, 10
                  v_add_u32 v{4+i}, s6, v2""")
        a(f"""s_lshl_b32 s13, s70, 12
              s_add_u32 s72, s68, s13         ; h ptr
              s_add_u32 s74, s68, {12*4096}
              s_mul_i32 s6, s3, 15360
              v_add_u32 v3, s6, v2
              s_mul_i32 s6, s3, 5120
              s_add_u32 s6, s6, 61440
              v_add_u32 v0, s6, v2
              s_lshl_b32 s13, s11, 7
              s_add_u32 s13, s13, {WS_FH}""")
        self.spoll([("s13", 0, 16), ("s13", 64, 16)], sleep=self.P("hsleep", 0))
        self.stamp("c2d")
        A2 = 176
        def ld_h(p, i, r):
            Hr[(p, i)] = r
            a(f"buffer_load_dwordx4 v[{r}:{r+3}], v{4+i}, {sWS}, s72 offen sc1")
            Ht[(p, i)] = a.vmt()
            if i == 3: a("s_add_u32 s72, s72, 4096\ns_cmp_eq_u32 s72, s74\ns_cselect_b32 s72, s68, s72")
        for p in range(3):
            for i in range(4): ld_h(p, i, 128 + 4 * (4 * p + i))
        GQ = [("h", p, i) for p in range(3, 9) for i in range(4)] + [("s", 10, mt) for mt in range(5)] + \
             [("h", 9, i) for i in range(4)] + [("s", 11, mt) for mt in range(5)] + \
             [("h", p, i) for p in (10, 11) for i in range(4)]
        Lt = {}
        spare = []
        def freed(r, p, isw, mt=None):
            if isw and (p + 1) in LP:
                k = LP.index(p + 1)
                a.wait(vm=Wl[(p + 1, mt)])
                if k < 3: a(f"ds_read_b128 v[{r}:{r+3}], v3 offset:{5120*k + 1024*mt}")
                else: a(f"ds_read_b128 v[{r}:{r+3}], v0 offset:{1024*mt}")
                Wr[(p + 1, mt)] = r; Lt[(p + 1, mt)] = a.lgt()
            elif GQ:
                kind, pp, x = GQ.pop(0)
                if kind == "h": ld_h(pp, x, r)
                else: ld_w(pp, x, r, "s14")()
            else: spare.append(r)
        def mf(p, mt, i):
            d = A2 + (i * 5 + mt) * 4
            c = "0" if p == 0 else f"v[{d}:{d+3}]"
            w, h = Wr[(p, mt)], Hr[(p, i)]
            a(f"v_mfma_f32_16x16x32_bf16 v[{d}:{d+3}], v[{w}:{w+3}], v[{h}:{h+3}], {c}")
        def need_w(p, mt, also=None):
            if p in LP:
                a.wait(vm=also, lg=Lt[(p, mt)])
            else:
                a.wait(vm=max(Wt[(p, mt)], also or 0))
        for p in range(9):
            for mt in range(5):
                if mt == 0:
                    for i in range(4):
                        need_w(p, mt, Ht[(p, i)]); mf(p, mt, i)
                else:
                    need_w(p, mt)
                    for i in range(4): mf(p, mt, i)
                freed(Wr[(p, mt)], p, True, mt)
            for i in range(4): freed(Hr[(p, i)], p, False)
            self.stamp("2")
            if p == 7:
                assert not GQ
                T = spare.pop(0); GV = spare.pop(0)
                a(f"""s_lshr_b32 s6, s11, 2
                      s_sub_u32 s6, s6, 3
                      s_cmp_lt_u32 s6, 2
                      s_cselect_b32 s6, 4096, 0
                      s_mul_i32 s12, s8, 320
                      s_add_u32 s12, s12, s6
                      s_add_u32 s12, s12, {WS_FA}
                      v_min_u32 v{T}, 39, v1
                      v_lshlrev_b32 v{T}, 3, v{T}
                      s_lshl_b32 s13, s11, 2
                      s_add_u32 s13, s13, s3
                      s_lshl_b32 s13, s13, 6
                      s_add_u32 s13, s13, {WS_G}
                      v_and_b32 v{GV+1}, 15, v1
                      v_lshlrev_b32 v{GV+1}, 2, v{GV+1}
                      buffer_load_dword v{GV}, v{GV+1}, {sWS}, s13 offen sc1""")
                self.pload(T, T + 2, "s12", 2, cond=False)
                tfa = a.vmt()
                a(f"""s_mul_i32 s13, s8, 80
                      s_lshl_b32 s6, s3, 4
                      s_add_u32 s13, s13, s6
                      s_lshl_b32 s13, s13, 12
                      s_lshl_b32 s6, s11, 7
                      s_add_u32 s13, s13, s6
                      s_add_u32 s73, s13, {WS_AT}
                      v_lshrrev_b32 v{GV+2}, 3, v1
                      v_lshlrev_b32 v{GV+2}, 12, v{GV+2}
                      v_and_b32 v{GV+3}, 7, v1
                      v_lshl_add_u32 v{GV+2}, v{GV+3}, 4, v{GV+2}
                      s_mul_i32 s75, s3, 5120
                      s_add_u32 s75, s75, 61440""")
        def at_dma():
            Lk = a.label("skipd")
            a(f"""s_mov_b32 m0, s75
                  s_add_u32 s13, s73, {8*4096 - 1024}
                  buffer_load_dwordx4 v{GV+2}, {sWS}, s73 offen sc1 lds ; cond
                  buffer_load_dwordx4 v{GV+2}, {sWS}, s13 offen offset:1024 sc1 lds ; cond
                  s_cmp_lg_u32 s3, 0
                  s_cbranch_scc1 {Lk}
                  s_add_u32 s13, s73, {64*4096 - 2048}
                  s_add_u32 s14, s73, {72*4096 - 3072}
                  buffer_load_dwordx4 v{GV+2}, {sWS}, s13 offen offset:2048 sc1 lds ; cond
                  buffer_load_dwordx4 v{GV+2}, {sWS}, s14 offen offset:3072 sc1 lds ; cond
                  {Lk}:""")
        a.wait(vm=tfa)
        Lna = a.label("noat")
        a("s_mov_b32 s76, 0")
        if not noC:
            self.chk(T + 2, 2)
            a(f"s_cbranch_vccnz {Lna}")
        at_dma()
        a(f"s_mov_b32 s76, 1\n{Lna}:")
        self.stamp("c2")
        fill = []
        for i in range(4):
            for p in (9, 10, 11):
                for mt in range(5):
                    mf(p, mt, i)
                    if fill and (p, mt) != (9, 0) and mt % 2 == 1: a(fill.pop(0))
            assert not fill
            if i < 3:
                for mt in range(5):
                    d = A2 + (i * 5 + mt) * 4
                    fill.append(f"ds_write_b128 v3, v[{d}:{d+3}] offset:{5120*i + 1024*mt}")
        self.stamp("2")
        Lha = a.label("hasat")
        a(f"s_cmp_eq_u32 s76, 1\ns_cbranch_scc1 {Lha}")
        self.poll(T, T + 2, soff="s12", w=2)
        at_dma()
        a(f"{Lha}:")
        for i in range(3):
            a(f"""s_sub_u32 s6, s3, {i + 1}
                  s_and_b32 s6, s6, 3
                  s_mul_i32 s6, s6, 15360
                  s_add_u32 s6, s6, {5120 * i}
                  v_add_u32 v{4+i}, s6, v2""")
        a(f"""v_lshrrev_b32 v7, 2, v1
              v_lshlrev_b32 v7, 7, v7
              v_and_b32 v0, 3, v1
              v_lshl_add_u32 v7, v0, 3, v7
              s_lshl_b32 s13, s3, 5
              s_add_u32 s13, s13, 61440
              v_add_u32 v7, s13, v7
              s_waitcnt vmcnt(0) lgkmcnt(0)
              s_barrier""")
        self.stamp("c2")
        OWN = A2 + 60
        pool = [r for r in range(8, 176, 4) if r not in (GV,)]
        RD = {}
        AA = [pool.pop(0) for _ in range(3)]
        aa = lambda mt: AA[mt // 2] + 2 * (mt % 2)
        for mt in range(5):
            a(f"ds_read_b64_tr_b16 v[{aa(mt)}:{aa(mt)+1}], v7 offset:{5120*mt if mt < 4 else 2048}")
        tA = a.lgt(); tR = {}
        def rdp(i):
            for mt in range(5):
                r = pool.pop(0); RD[(i, mt)] = r
                a(f"ds_read_b128 v[{r}:{r+3}], v{4+i} offset:{1024*mt}")
            tR[i] = a.lgt()
        rdp(0); rdp(1)
        G = GV; OM = GV + 2
        a(f"""v_mov_b32 v{G+1}, v{G}
              v_sub_f32 v{OM}, 1.0, v{G}
              s_mov_b32 s13, 0xffff0000
              v_cvt_pk_bf16_f32 v{OM}, 0, v{OM}""")
        a.wait(lg=tA); rdp(2)
        a(f"v_mov_b32 v{OM+1}, v{OM}")
        GA = [pool.pop(0) for _ in range(5)]
        for mt in range(5):
            r = GA[mt]
            for i in range(2):
                a(f"v_lshlrev_b32 v{r+2*i}, 16, v{aa(mt)+i}\nv_and_b32 v{r+2*i+1}, s13, v{aa(mt)+i}")
            for i in range(2):
                a(f"v_pk_mul_f32 v[{r+2*i}:{r+2*i+1}], v[{r+2*i}:{r+2*i+1}], v[{G}:{G+1}]")
            for i in range(4): a(f"v_cvt_pk_bf16_f32 v{r+i}, 0, v{r+i}")
        for i in range(3):
            a.wait(lg=tR[i])
            for mt in range(5):
                for k in (0, 2):
                    o = OWN + 4 * mt + k; r = RD[(i, mt)] + k
                    a(f"v_pk_add_f32 v[{o}:{o+1}], v[{o}:{o+1}], v[{r}:{r+1}]")
        a(f"""s_lshl_b32 s13, s11, 2
              s_add_u32 s13, s13, s3
              s_mul_i32 s13, s13, {16*1280}
              s_mul_i32 s14, s8, 160
              s_add_u32 s13, s13, s14
              v_and_b32 v3, 15, v1
              v_mul_u32_u24 v3, 1280, v3
              v_lshrrev_b32 v5, 4, v1
              v_lshl_add_u32 v4, v5, 3, v3      ; tile4: + 8*g4
              v_bfe_u32 v5, v1, 4, 1
              v_lshl_add_u32 v3, v5, 5, v3
              v_lshrrev_b32 v5, 5, v1
              v_lshl_add_u32 v3, v5, 4, v3""")
        OP = A2
        for mt in range(5):
            o = OWN + 4 * mt; r = GA[mt]
            for i in range(4): a(f"v_cvt_pk_bf16_f32 v{o+i}, 0, v{o+i}")
            for k in (0, 2): a(f"v_pk_mul_f32 v[{o+k}:{o+k+1}], v[{o+k}:{o+k+1}], v[{OM}:{OM+1}]")
            for i in range(4): a(f"v_cvt_pk_bf16_f32 v{o+i}, 0, v{o+i}")
            for k in (0, 2): a(f"v_pk_add_f32 v[{o+k}:{o+k+1}], v[{o+k}:{o+k+1}], v[{r+k}:{r+k+1}]")
            for i in range(2): a(f"v_cvt_pk_bf16_f32 v{OP+2*mt+i}, v{o+2*i}, v{o+2*i+1}")
            if mt % 2 == 1:
                p = OP + 2 * (mt - 1)
                a(f"v_permlane16_swap_b32 v{p}, v{p+2}\nv_permlane16_swap_b32 v{p+1}, v{p+3}")
                a(f"buffer_store_dwordx4 v[{p}:{p+3}], v3, {sOUT}, s13 offen offset:{32*(mt-1)}")
        a(f"buffer_store_dwordx2 v[{OP+8}:{OP+9}], v4, {sOUT}, s13 offen offset:128")
        self.end()

    def conv_addr(self, chs, va, vb):
        self.a(f"""s_mul_i32 s13, {chs}, {VSTR}
              s_mul_i32 s14, {chs}, {CSTR}
              s_add_u32 s14, s14, {CPB}
              v_bfe_u32 v6, v1, 2, 2
              v_mul_u32_u24 v7, {CPY}, v6
              v_add_u32 v7, s14, v7
              v_mov_b32 v{va}, s13
              v_cmp_eq_u32 vcc, 3, v6
              v_and_b32 v6, 3, v1
              v_cndmask_b32 v{va}, v7, v{va}, vcc
              v_lshl_add_u32 v{va}, v6, 3, v{va}
              v_lshrrev_b32 v7, 4, v1
              v_lshlrev_b32 v7, 4, v7
              v_sub_u32 v{va}, v{va}, v7
              v_add_u32 v{va}, 32, v{va}
              v_and_b32 v6, 15, v1
              v_lshl_add_u32 v{vb}, v6, 5, v7
              s_add_u32 s13, s13, {KXO}
              v_add_u32 v{vb}, s13, v{vb}""")
    def conv(self, tiles, acc, AS, BS, va, vb, aoff, boff, fill, first_issued=None, nxt=None, fper=1):
        a = self.a
        nf = max(tiles) + 1
        def reads(q, aoff, boff):
            L = []; g = q % 2
            for k in range(nf):
                L.append(f"ds_read_b128 v[{BS[g]+4*k}:{BS[g]+4*k+3}], v{vb} offset:{boff + 64*(8*k+q)}")
                for h in range(2):
                    r = AS[g] + 4 * k + 2 * h
                    L.append(f"ds_read_b64_tr_b16 v[{r}:{r+1}], v{va} offset:{512*k + 480 - 64*q - 8*h}".replace(f"v{va} ", f"v{aoff} "))
            return L
        if first_issued is None:
            for t in reads(0, aoff, boff): a(t)
            tq = a.lgt()
        else: tq = first_issued
        seen = set()
        for q in range(8):
            g = q % 2
            if q < 7: nx = reads(q + 1, aoff, boff)
            elif nxt is not None: nx = reads(0, nxt[0], nxt[1])
            else: nx = []
            a.wait(lg=tq)
            pairs = [(m, r) for r in range(nf) for m in range(nf) if (m + r) in tiles]
            per = -(-len(nx) // len(pairs))
            for (m, r) in pairs:
                d = acc[m + r]
                c = f"v[{d}:{d+3}]" if (m + r) in seen else "0"
                seen.add(m + r)
                a(f"v_mfma_f32_16x16x32_bf16 v[{d}:{d+3}], v[{AS[g]+4*m}:{AS[g]+4*m+3}], v[{BS[g]+4*r}:{BS[g]+4*r+3}], {c}")
                for _ in range(per):
                    if nx: a(nx.pop(0))
                if q >= 1:
                    for _ in range(fper):
                        if fill:
                            it = fill.pop(0)
                            it() if callable(it) else a(it)
            tq = a.lgt()
        return tq
    def ud_fill(self, uregs, ud, dsk):
        L = []
        for i in range(2):
            L += [f"v_lshlrev_b32 v{ud+2*i}, 16, v{uregs+i}", f"v_and_b32 v{ud+2*i+1}, s12, v{uregs+i}"]
        L += [f"v_mul_f32 v{ud+i}, v{dsk}, v{ud+i}" for i in range(4)]
        L += [f"v_cvt_pk_bf16_f32 v{ud+i}, 0, v{ud+i}" for i in range(4)]
        return L
    def epi_pair(self, y0, y1, ud0, ud1, o, vaddr, soff, off):
        L = []
        for k, (y, ud) in enumerate(((y0, ud0), (y1, ud1))):
            L += [f"v_cvt_pk_bf16_f32 v{y+i}, 0, v{y+i}" for i in range(4)]
            L += [f"v_add_f32 v{y+i}, v{y+i}, v{ud+i}" for i in range(4)]
            L += [f"v_cvt_pk_bf16_f32 v{o+2*k+i}, v{y+2*i}, v{y+2*i+1}" for i in range(2)]
        L += [f"v_permlane16_swap_b32 v{o}, v{o+2}", f"v_permlane16_swap_b32 v{o+1}, v{o+3}",
              f"buffer_store_dwordx4 v[{o}:{o+3}], v{vaddr}, {sWS}, {soff} offen offset:{off} sc1"]
        return L

    def role_c(self):
        a = self.a
        a(f"""LC:
              s_and_b32 s5, s2, 255          ; q
              s_mul_i32 s6, s5, 3
              s_lshl_b32 s7, s5, 1
              s_add_u32 s7, s7, 128
              s_cmp_lt_u32 s5, 128
              s_cselect_b32 s6, s6, s7
              s_cselect_b32 s7, 3, 2         ; nch
              s_cmp_eq_u32 s3, 3
              s_cbranch_scc1 LW3
              s_cmp_ge_u32 s3, s7
              s_cbranch_scc1 LUPD
              s_add_u32 s6, s6, s3           ; channel
              s_mul_i32 s8, s3, {VSTR}       ; V base""")
        P = 8
        for i in range(20): a(f"v_mov_b32 v{P+i}, 0")
        VF = 5
        a(f"""s_mul_i32 s9, s6, 384
              v_lshl_add_u32 v2, v1, 1, s9
              s_lshl_b32 s10, s6, 1
              v_mov_b32 v3, s10
              s_mov_b32 m0, s8
              v_and_b32 v6, 15, v1
              v_mul_u32_u24 v6, 800, v6
              v_lshrrev_b32 v7, 4, v1
              v_lshl_add_u32 v6, v7, 4, v6
              v_add_u32 v{VF}, s8, v6""")
        self.kwait()
        a(f"global_load_short_d16_hi v{P+18}, v3, s[30:31]")
        for k in range(6):
            for g in range(3):
                a(f"global_load_short_d16_hi v{P+3*k+g}, v2, s[{18+2*k}:{19+2*k}] offset:{128*g}")
            if k == 1: t_a = a.vmt()
        a(f"global_load_short_d16_hi v{P+19}, v3, s[32:33]")
        self.wssrd()
        a(f"v_mov_b32 v6, 0x3f80")
        for g in range(3): a(f"ds_write_addtid_b32 v6 offset:{256*g}")
        a.wait(vm=t_a)
        self.stamp("ck")
        DT = P + 18; DSK = P + 19
        Lhi = struct.unpack("<f", struct.pack("<f", LOG2E))[0]; Llo = LOG2E - Lhi
        a(f"""s_mov_b32 s11, {f32(Lhi)}
              v_mul_f32 v6, s11, v{DT}
              v_fma_f32 v7, v{DT}, s11, -v6
              v_fmac_f32 v7, {f32(Llo)}, v{DT}
              v_exp_f32 v6, v6
              v_mul_f32 v7, {f32(0.6931471805599453)}, v7
              v_fmac_f32 v6, v6, v7
              v_cvt_pk_bf16_f32 v{DT}, 0, v6""")
        A2, W = P, P + 3
        for g in range(3):
            a(f"v_mul_f32 v{A2+g}, v{DT}, v{A2+g}\nv_mul_f32 v{W+g}, v{DT}, v{W+g}")
        for g in range(3):
            a(f"v_mul_f32 v{A2+g}, s11, v{A2+g}\nv_mul_f32 v{W+g}, 0.15915494309189535, v{W+g}")
        nxt = [32]
        def alloc():
            r = nxt[0]; nxt[0] += 6; assert nxt[0] <= 128; return r
        TMP = alloc(); PK = 28
        mq = []; cnt = [0]
        def v(t):
            a(t); cnt[0] += 1
            if mq and cnt[0] % 5 == 0: mq.pop(0)()
        def cmul(z, p, q, conj=False):
            if not conj:
                for g in range(3): v(f"v_mul_f32 v{z+2*g}, v{p+2*g}, v{q+2*g}")
                for g in range(3): v(f"v_mul_f32 v{z+2*g+1}, v{p+2*g}, v{q+2*g+1}")
                for g in range(3): v(f"v_fma_f32 v{z+2*g}, -v{p+2*g+1}, v{q+2*g+1}, v{z+2*g}")
                for g in range(3): v(f"v_fmac_f32 v{z+2*g+1}, v{p+2*g+1}, v{q+2*g}")
            else:
                for g in range(3): v(f"v_mul_f32 v{z+2*g}, v{p+2*g}, v{q+2*g}")
                for g in range(3): v(f"v_mul_f32 v{z+2*g+1}, v{p+2*g+1}, v{q+2*g}")
                for g in range(3): v(f"v_fmac_f32 v{z+2*g}, v{p+2*g+1}, v{q+2*g+1}")
                for g in range(3): v(f"v_fma_f32 v{z+2*g+1}, -v{p+2*g}, v{q+2*g+1}, v{z+2*g+1}")
        def put(z, vec):
            for g in range(3): v(f"v_cvt_pk_bf16_f32 v{PK+g}, v{z+2*g}, v{z+2*g+1}")
            for g in range(3): v(f"ds_write_addtid_b32 v{PK+g} offset:{vec*800 + 256*g}")
        def direct(z, l):
            lit = "1.0" if l == 1 else f32(float(l))
            for g in range(3):
                if l == 1: v(f"v_fract_f32 v{TMP+2*g}, v{W+g}\nv_exp_f32 v{TMP+2*g+1}, v{A2+g}")
                else: v(f"v_mul_f32 v{TMP+2*g}, {lit}, v{W+g}\nv_mul_f32 v{TMP+2*g+1}, {lit}, v{A2+g}")
            if l != 1:
                for g in range(3): v(f"v_fract_f32 v{TMP+2*g}, v{TMP+2*g}\nv_exp_f32 v{TMP+2*g+1}, v{TMP+2*g+1}")
            for g in range(3): v(f"v_cos_f32 v{z+2*g}, v{TMP+2*g}\nv_sin_f32 v{z+2*g+1}, v{TMP+2*g}")
            for g in range(3): v(f"v_mul_f32 v{z+2*g}, v{z+2*g}, v{TMP+2*g+1}\nv_mul_f32 v{z+2*g+1}, v{z+2*g+1}, v{TMP+2*g+1}")
        def frags(base):
            for ks in range(12):
                a(f"ds_read_b128 v[{base+4*ks}:{base+4*ks+3}], v{VF} offset:{64*ks}")
            return a.lgt()
        CF = 176; RF = 128; DK = 224
        def mm(t, trf):
            d = DK + 4 * t
            def one(ks):
                def f():
                    if ks == 0: a.wait(lg=trf)
                    c = "0" if ks == 0 else f"v[{d}:{d+3}]"
                    a(f"v_mfma_f32_16x16x32_bf16 v[{d}:{d+3}], v[{RF+4*ks}:{RF+4*ks+3}], v[{CF+4*ks}:{CF+4*ks+3}], {c}")
                return f
            return [one(ks) for ks in range(12)]
        E1 = alloc(); E2 = alloc(); E4 = alloc(); E8 = alloc(); E12 = alloc(); E16 = alloc(); Z0 = alloc(); Z1 = alloc()
        direct(E1, 1); put(E1, 1)
        cur = E1; named = {2: E2, 4: E4, 8: E8, 12: E12, 16: E16}
        for k in range(2, 17):
            z = named.get(k) or (Z0 if cur != Z0 else Z1)
            cmul(z, cur, E1)
            if k < 16: put(z, k)
            cur = z
        self.stamp("k")
        frags(RF)
        a(f"s_waitcnt vmcnt(0)")
        for g in range(3):
            a(f"v_mul_f32 v{P+6+g}, v{DT}, v{P+6+g}\nv_mul_f32 v{P+9+g}, v{DT}, v{P+9+g}")
        for g in range(3):
            bre, bim, cre, cim = P + 6 + g, P + 9 + g, P + 12 + g, P + 15 + g
            a(f"""v_mul_f32 v{Z0+2*g}, v{cre}, v{bre}
                  v_mul_f32 v{Z0+2*g+1}, v{cre}, v{bim}""")
        for g in range(3):
            bre, bim, cre, cim = P + 6 + g, P + 9 + g, P + 12 + g, P + 15 + g
            a(f"""v_fma_f32 v{Z0+2*g}, -v{cim}, v{bim}, v{Z0+2*g}
                  v_fma_f32 v{Z0+2*g+1}, -v{cim}, v{bre}, -v{Z0+2*g+1}""")
        put(Z0, 0)
        cur, oth = Z0, Z1
        for r in range(1, 16):
            cmul(oth, cur, E16, conj=True); put(oth, r); cur, oth = oth, cur
        self.stamp("k")
        tcf = frags(CF)
        E256 = alloc(); E512 = alloc(); E768 = alloc()
        direct(E256, 256)
        mq += mm(0, tcf)
        put(E256, 0)
        cur = E256
        for i in range(1, 8):
            z = Z0 if cur != Z0 else Z1
            cmul(z, cur, E2); put(z, i); cur = z
        cmul(E512, E256, E256); put(E512, 8)
        cmul(E768, E512, E256); put(E768, 12)
        for b, row in ((E512, 8), (E768, 12)):
            for i, e in enumerate((E4, E8, E12)):
                z = Z0 if i % 2 == 0 else Z1
                cmul(z, b, e); put(z, row + 1 + i)
        assert not mq
        self.stamp("k")
        t1 = frags(RF)
        Eb = E1
        cmul(Eb, E512, E512)
        cmul(E2, E768, E768)
        mq += mm(1, t1)
        cmul(E4, Eb, E256)
        cmul(E12, E2, E256)
        for b, row in ((Eb, 0), (E4, 4), (E2, 8), (E12, 12)):
            put(b, row)
            cmul(Z0, b, E8); put(Z0, row + 1)
        cmul(Z1, Z0, E8); put(Z1, 14)
        while mq: mq.pop(0)()
        t2 = frags(RF)
        X = 32
        d0, d1, d2 = DK, DK + 4, DK + 8
        a(f"""s_add_u32 s9, s8, {KXO}
              v_and_b32 v6, 15, v1
              v_lshrrev_b32 v7, 4, v1
              v_lshl_add_u32 v6, v6, 5, s9           ; Kx + 32 r
              v_lshl_add_u32 v2, v7, 3, v6           ; seg0 (+480)
              v_lshl_add_u32 v4, v7, 4, v6           ; seg1 (+992)
              v_lshl_add_u32 v5, v7, 9, v6
              v_min_u32 v6, 29, v1
              v_lshl_add_u32 v6, v6, 4, s9
              v_mov_b32 v28, 0
              v_mov_b32 v29, 0
              v_mov_b32 v30, 0
              v_mov_b32 v31, 0
              v_cvt_pk_bf16_f32 v{X}, v{d0}, v{d0+1}
              v_cvt_pk_bf16_f32 v{X+1}, v{d0+2}, v{d0+3}
              s_waitcnt lgkmcnt(0)
              s_add_u32 {TAG}, {TAG}, 1""")
        self.stamp("ck")
        a("s_barrier")
        self.stamp("ck")
        m2 = mm(2, a.lgt())
        NX, NA, NB, N1, N2 = X + 24, X + 25, X + 26, X + 27, X + 28
        pre = [f"ds_write_b128 v6, v[28:31]", f"ds_write_b64 v2, v[{X}:{X+1}] offset:480",
               f"v_mov_b32_dpp v{NX}, v{d1} wave_shl:1 {DPP}", f"v_mov_b32 v{NA}, v{d1}", "s_mov_b64 s[10:11], 0xffff",
               f"v_mov_b32 v{NB}, v{NX}", "s_mov_b32 s14, 0x7fff0000", "s_mov_b32 s15, 0",
               f"v_permlane16_swap_b32 v{NA}, v{NB}", "s_nop 0",
               f"v_cndmask_b32 v{N1}, v{NX}, v{NB}, s[10:11]", f"v_cndmask_b32 v{N1}, v{N1}, v{NA}, s[14:15]"]
        for f in m2:
            f()
            if pre: a(pre.pop(0))
        A_ = [d1, d1 + 1, d1 + 2, d1 + 3, N1]; B_ = [d2, d2 + 1, N2]
        def cv(r, pairs, src):
            for i, (lo, hi) in enumerate(pairs):
                a(f"v_cvt_pk_bf16_f32 v{r+i}, v{src[lo]}, v{src[hi]}")
        cv(X + 12, [(0,0),(1,2),(2,2),(3,4)], A_)
        cv(X + 16, [(0,0),(0,1),(1,1),(2,2),(2,2),(2,3),(3,3)], A_)
        a(f"""s_mov_b32 exec_hi, 0
              ds_write_b128 v4, v[{X+12}:{X+15}] offset:992
              s_mov_b64 exec, -1
              v_readlane_b32 s10, v{d2}, 0
              v_mov_b32 v{N2}, v{d2+2}
              v_writelane_b32 v{N1}, s10, 63
              v_mov_b32_dpp v{N2}, v{d2} wave_shl:1 {DPP}
              v_cvt_pk_bf16_f32 v{X+23}, v{N1}, v{N1}""")
        cv(X + 4, [(0,0),(0,0),(0,1),(1,1),(1,1),(1,1),(2,2),(2,2)], B_)
        a(f"""ds_write_b128 v5, v[{X+4}:{X+7}] offset:2528
              ds_write_b128 v5, v[{X+8}:{X+11}] offset:2544
              s_mov_b32 exec_lo, 0
              ds_write_b128 v5, v[{X+16}:{X+19}] offset:480
              ds_write_b128 v5, v[{X+20}:{X+23}] offset:496
              s_mov_b64 exec, -1""")
        self.conv_addr("s3", 3, 4)
        if self.dumpk:
            a(f"""s_waitcnt lgkmcnt(0)
                  v_lshl_add_u32 v6, v1, 4, s9
                  s_mul_i32 s10, s6, 4608
                  s_add_u32 s10, s10, {WS_K}
                  v_lshlrev_b32 v7, 4, v1""")
            for p in range(5):
                a(f"ds_read_b128 v[96:99], v6 offset:{1024*p}\ns_waitcnt lgkmcnt(0)")
                if p == 4: a("s_mov_b32 exec_hi, 0")
                a(f"buffer_store_dwordx4 v[96:99], v7, {sWS}, s10 offen\ns_add_u32 s10, s10, 1024\ns_waitcnt vmcnt(0)")
            a("s_mov_b64 exec, -1")
        a(f"""s_mul_i32 s14, s3, {CSTR}
              s_add_u32 s14, s14, {CPB + 32}
              v_and_b32 v6, 15, v1
              v_lshrrev_b32 v7, 4, v1
              v_lshl_add_u32 v5, v6, 5, s14
              v_lshl_add_u32 v5, v7, 3, v5
              v_lshlrev_b32 v6, 5, v6
              v_lshrrev_b32 v7, 5, v1
              v_lshl_add_u32 v6, v7, 4, v6
              v_bfe_u32 v7, v1, 4, 1
              v_lshl_add_u32 v2, v7, 9, v6          ; delta 1
              v_mul_u32_u24 v7, 1536, v7
              v_add_u32 v0, v7, v6                  ; delta 3
              s_mov_b32 s12, 0xffff0000
              s_lshl_b32 s9, s6, 12
              s_add_u32 s9, s9, {WS_AT}
              s_waitcnt lgkmcnt(0)
              s_barrier""")
        if self.P("cprio", 1): a(f"s_setprio {self.P('cprio', 1)}")
        self.stamp()
        tiles = [0, 1, 2, 5, 6, 7]
        acc = {n: 32 + 4 * i for i, n in enumerate(tiles)}
        UU = 8; UDR = 192 + 32
        ud = {n: 196 + 4 * i for i, n in enumerate(tiles)}
        for i, n in enumerate(tiles): a(f"ds_read_b64 v[{UU+2*i}:{UU+2*i+1}], v5 offset:{512*n}")
        fill = []
        for i, n in enumerate(tiles): fill += self.ud_fill(UU + 2 * i, ud[n], DSK)
        self.conv(tiles, acc, (64, 96), (128, 160), 3, 4, 3, 0, fill)
        assert not fill
        self.stamp()
        for k, (x, y, va) in enumerate(((0, 1, 2), (2, 5, 0), (6, 7, 2))):
            for t in self.epi_pair(acc[x], acc[y], ud[x], ud[y], 64 + 4 * k, va, "s9", 512 * x): a(t)
        a(f"""s_lshl_b32 s9, s6, 2
              s_add_u32 s9, s9, {WS_FA}
              s_waitcnt vmcnt(0)""")
        self.flag("s9", 8)
        self.end()

    def wave3(self):
        a = self.a
        ST = CPB
        a(f"""LW3:
              s_mul_i32 s9, s5, 2731
              s_lshr_b32 s9, s9, 16          ; db = q / 24
              s_mul_i32 s8, s9, 24
              s_sub_u32 s8, s5, s8           ; fb
              v_lshrrev_b32 v2, 3, v1
              v_mul_u32_u24 v2, 1280, v2
              v_and_b32 v3, 7, v1
              v_lshl_add_u32 v2, v3, 4, v2
              s_mul_i32 s11, s8, {64*1280}
              s_lshl_b32 s12, s9, 7
              s_add_u32 s11, s11, s12
              s_mov_b32 m0, {ST}
              v_mov_b32 v8, 0
              v_mov_b32 v9, 0
              v_mov_b32 v10, 0
              s_lshl_b32 s10, s6, 1
              v_mov_b32 v11, s10
              v_bfe_u32 v3, v1, 4, 1
              v_lshlrev_b32 v3, 4, v3
              v_lshrrev_b32 v4, 5, v1
              v_lshl_add_u32 v3, v4, 2, v3
              v_bfe_u32 v4, v1, 2, 2
              v_add_u32 v3, v3, v4
              v_lshlrev_b32 v3, 7, v3
              v_and_b32 v4, 3, v1
              v_lshl_add_u32 v3, v4, 3, v3
              v_add_u32 v3, {ST}, v3""")
        self.kwait()
        self.srd(52, 38, 1966080)
        for p in range(8):
            a(f"buffer_load_dwordx4 v2, {sW2}, s11 offen offset:{1024*(p % 4)} lds")
            if p == 3: a(f"s_add_u32 m0, m0, 4096\ns_add_u32 s11, s11, {8*1280 + 3072}")
            elif p < 7: a(f"s_add_u32 s11, s11, {8*1280 - 1024}")
        self.wssrd()
        self.srd(64, 32, 1280)
        for c in range(3): a(f"buffer_load_short_d16_hi v{8+c}, v11, s[64:67], 0 offen offset:{2*c}")
        a("v_lshlrev_b32 v2, 4, v1")
        for dt in range(4):
            a(f"""s_lshl_b32 s12, s9, 2
                  s_add_u32 s12, s12, {dt}
                  s_mul_i32 s13, s12, 205
                  s_lshr_b32 s13, s13, 10
                  s_mul_i32 s14, s13, 235
                  s_add_u32 s12, s12, s14
                  s_mul_i32 s14, s8, 10
                  s_add_u32 s12, s12, s14
                  s_lshl_b32 s12, s12, 10
                  s_add_u32 s{72+dt}, s12, {WS_W2F}""")
        a(f"""s_waitcnt vmcnt(0) lgkmcnt(0)
              s_add_u32 {TAG}, {TAG}, 1""")
        self.stamp()
        a("s_cmp_ge_u32 s5, 240\ns_cbranch_scc1 LW3u")
        for kk in range(2):
            for dt in range(4):
                r = 16 + 4 * (kk * 4 + dt)
                for h in range(2):
                    a(f"ds_read_b64_tr_b16 v[{r+2*h}:{r+2*h+1}], v3 offset:{(32*kk + 8*h)*128 + 32*dt}")
            if kk == 0: t0 = a.lgt()
        for kk in range(2):
            if kk == 0: a.wait(lg=t0)
            else: a("s_waitcnt lgkmcnt(0)")
            for dt in range(4):
                r = 16 + 4 * (kk * 4 + dt)
                a(f"buffer_store_dwordx4 v[{r}:{r+3}], v2, {sWS}, s{72+dt} offen sc1\ns_add_u32 s{72+dt}, s{72+dt}, 5120")
        a(f"""s_lshl_b32 s12, s9, 5
              s_add_u32 s12, s12, s8
              s_lshl_b32 s12, s12, 2
              s_add_u32 s12, s12, {WS_FW}
              s_waitcnt vmcnt(0)""")
        self.flag("s12", 4)
        a("LW3u:")
        self.stamp()
        a(f"""s_lshr_b32 s9, s6, 6
              s_lshl_b32 s9, s9, 6
              s_add_u32 s9, s9, {WS_FU}
              s_add_u32 s10, s6, s7
              s_sub_u32 s10, s10, 1
              s_lshr_b32 s10, s10, 6
              s_lshl_b32 s10, s10, 6
              s_add_u32 s10, s10, {WS_FU}""")
        if "noG" not in self.opts:
            self.spoll([("s9", 0, 16), ("s10", 0, 16)], sleep=self.P("usleep", 0))
        self.stamp()
        UW = 16
        a(f"s_lshl_b32 s9, s6, 12\ns_add_u32 s9, s9, {WS_UT}")
        tu = []
        for c in range(3):
            for p in range(4):
                a(f"buffer_load_dwordx4 v[{UW+16*c+4*p}:{UW+16*c+4*p+3}], v2, {sWS}, s9 offen offset:{1024*p} sc1")
            tu.append(a.vmt())
            if c < 2: a("s_add_u32 s9, s9, 4096")
        a(f"""v_and_b32 v6, 1, v1
              v_lshlrev_b32 v6, 4, v6
              v_lshrrev_b32 v7, 1, v1
              v_min_u32 v7, 8, v7
              v_mul_u32_u24 v7, {CPY}, v7
              v_add_u32 v6, v6, v7
              v_mov_b32 v12, 0
              v_mov_b32 v13, 0
              v_mov_b32 v14, 0
              v_mov_b32 v15, 0
              v_add_u32 v5, {CPB}, v2
              ds_write_b128 v6, v[12:15] offset:{CPB}""")
        C3 = 64
        for c in range(3):
            a.wait(vm=tu[c])
            for p in range(4):
                w = UW + 16 * c + 4 * p; T = 112 + 16 * (p % 2); c3 = C3 + 16 * c + 4 * p
                base = c * CSTR + 32 + 1024 * p
                if p == 0:
                    a(f"v_mov_b32 v{T}, 0\nv_mov_b32 v{T+12}, 0")
                else:
                    a(f"v_mov_b32_dpp v{T}, v{w-1} wave_ror:1 {DPP}\nv_mov_b32_dpp v{T+12}, v{w-2} wave_ror:1 {DPP}")
                a(f"ds_write_b128 v5, v[{w}:{w+3}] offset:{base}")
                a(f"v_mov_b32_dpp v{T}, v{w+3} wave_shr:1 {DPP}\nv_mov_b32_dpp v{T+12}, v{w+2} wave_shr:1 {DPP}")
                for i in range(3): a(f"v_mov_b32 v{T+1+i}, v{w+i}")
                for i in range(4): a(f"v_alignbit_b32 v{T+4+i}, v{w+i}, v{T+i}, 16")
                a(f"v_alignbit_b32 v{c3}, v{T}, v{T+12}, 16")
                for i in range(1, 4): a(f"v_alignbit_b32 v{c3+i}, v{T+i}, v{T+i-1}, 16")
                a(f"""ds_write_b128 v5, v[{T+4}:{T+7}] offset:{base + CPY}
                      ds_write_b128 v5, v[{T}:{T+3}] offset:{base + 2*CPY}""")
        a("s_mov_b32 s8, 0")
        self.conv_addr("s8", 3, 4)
        a(f"""v_mov_b32 v6, {CSTR}
              v_mov_b32 v7, {VSTR}
              v_cndmask_b32 v6, v6, v7, vcc
              v_add_u32 v11, v3, v6
              v_add_u32 v16, v11, v6
              v_and_b32 v6, 15, v1
              v_lshrrev_b32 v7, 4, v1
              v_lshlrev_b32 v5, 5, v6
              v_lshl_add_u32 v5, v7, 3, v5
              v_lshlrev_b32 v6, 5, v6
              v_lshrrev_b32 v7, 5, v1
              v_lshl_add_u32 v6, v7, 4, v6
              v_bfe_u32 v7, v1, 4, 1
              v_lshl_add_u32 v0, v7, 9, v6          ; delta 1
              v_and_b32 v6, 1, v1
              v_lshlrev_b32 v6, 4, v6
              v_bfe_u32 v7, v1, 1, 2
              v_min_u32 v7, 2, v7
              v_mul_u32_u24 v7, {VSTR}, v7
              v_add_u32 v6, v6, v7
              s_mov_b32 s12, 0xffff0000
              s_lshl_b32 s9, s6, 12
              s_add_u32 s9, s9, {WS_AT}
              s_waitcnt lgkmcnt(0)""")
        self.stamp()
        a("s_barrier")
        a("ds_write_b128 v6, v[12:15]")
        for c in range(3):
            for p in range(4):
                c3 = C3 + 16 * c + 4 * p
                a(f"ds_write_b128 v2, v[{c3}:{c3+3}] offset:{c * VSTR + 32 + 1024 * p}")
        UU = 20; ud = {}
        for c in range(3):
            for k, n in enumerate((3, 4)):
                r = UU + 4 * c + 2 * k
                a(f"ds_read_b64 v[{r}:{r+1}], v5 offset:{CPB + c * CSTR + 32 + 512*n}")
                ud[(c, n)] = 32 + 8 * c + 4 * k
        a("s_waitcnt lgkmcnt(0)\ns_barrier")
        if self.P("cprio", 1): a(f"s_setprio {self.P('cprio', 1)}")
        self.stamp()
        AS = (64, 84); BS = (104, 124)
        va = (3, 11, 16)
        accs = [{3: 144 + 8 * c, 4: 148 + 8 * c} for c in range(3)]
        udf = lambda c: self.ud_fill(UU + 4 * c, ud[(c, 3)], 8 + c) + self.ud_fill(UU + 4 * c + 2, ud[(c, 4)], 8 + c)
        def epi(c):
            L = self.epi_pair(accs[c][3], accs[c][4], ud[(c, 3)], ud[(c, 4)], 168 + 4 * c, 0, "s9", 512 * 3)
            return L + ["s_add_u32 s9, s9, 4096"]
        f = udf(0) + udf(1)
        t = self.conv([3, 4], accs[0], AS, BS, 3, 4, va[0], 0, f, nxt=(va[1], VSTR)); assert not f
        f = epi(0) + udf(2)
        t = self.conv([3, 4], accs[1], AS, BS, 3, 4, va[1], VSTR, f, first_issued=t, nxt=(va[2], 2 * VSTR)); assert not f
        a("s_cmp_eq_u32 s7, 2\ns_cbranch_scc1 LW3e")
        f = epi(1)
        self.conv([3, 4], accs[2], AS, BS, 3, 4, va[2], 2 * VSTR, f, first_issued=t); assert not f
        for x in epi(2): a(x)
        a("s_branch LW3f\nLW3e:\ns_waitcnt lgkmcnt(0)\ns_nop 7")
        for x in epi(1): a(x)
        a(f"""LW3f:
              s_lshl_b32 s9, s6, 2
              s_add_u32 s9, s9, {WS_FA + 4096}
              v_mov_b32 v8, {TAG}
              v_lshlrev_b32 v9, 2, v1
              s_bfm_b64 s[10:11], s7, 0
              s_waitcnt vmcnt(0)
              s_mov_b64 exec, s[10:11]
              buffer_store_dword v8, v9, {sWS}, s9 offen sc1
              s_mov_b64 exec, -1""")
        self.end()
        a(f"""LUPD:
              s_cmp_lg_u32 s5, 255
              s_cbranch_scc1 Lexit""")
        self.kwait(); self.wssrd()
        a(f"""s_waitcnt lgkmcnt(0)
              s_add_u32 {TAG}, {TAG}, 1
              s_barrier
              s_barrier""")
        self.stamp()
        a("v_lshlrev_b32 v2, 4, v1")
        for i in range(4 if "noG" not in self.opts else 0):
            a(f"s_mov_b32 s12, {WS_FH + 1024*i}"); self.poll(2, 4, soff="s12", w=4, sleep=4)
        for part in range(2):
            for i in range(3):
                if i == 2: a("v_min_u32 v3, 31, v1\nv_lshlrev_b32 v3, 4, v3")
                a(f"s_mov_b32 s12, {WS_FA + 4096*part + 1024*i}"); self.poll(2 if i < 2 else 3, 4, soff="s12", w=4, sleep=4)
        a(f"s_mov_b32 s12, {WS_E}")
        self.flag("s12", 4)
        self.end()
        a("Lexit:\ns_endpgm")

    def build(self):
        self.prologue(); self.role_g(); self.role_c(); self.wave3()
        body = self.a.finish()
        hdr = open("cdna_kernels/" + NAME + ".s.ref").read().split("; Override launch")[0]
        return hdr + f"""; @launch grid=(512,1,1) block=(256,1,1) lds=81920
.amdgcn_target "amdgcn-amd-amdhsa--gfx950"
.text
.globl {KN}
.p2align 8
.type {KN},@function
{KN}:
{body}.section .rodata,"a"
.p2align 6
.amdhsa_kernel {KN}
  .amdhsa_next_free_vgpr 256
  .amdhsa_next_free_sgpr 102
  .amdhsa_accum_offset 256
  .amdhsa_group_segment_fixed_size 0
  .amdhsa_kernarg_size 128
  .amdhsa_user_sgpr_count 2
  .amdhsa_user_sgpr_kernarg_segment_ptr 1
  .amdhsa_system_sgpr_workgroup_id_x 1
  .amdhsa_float_denorm_mode_32 3
.end_amdhsa_kernel
"""

if __name__ == "__main__":
    out = sys.argv[1] if len(sys.argv) > 1 else "cdna_kernels/" + NAME + ".s"
    prof = "prof" in sys.argv; dumpk = "dumpk" in sys.argv
    open(out, "w").write(Gen(prof, dumpk, sys.argv[2:]).build())
    print("wrote", out)
```

```python
import re

TRANS = ("v_exp_f32", "v_log_f32", "v_rcp_f32", "v_rsq_f32", "v_sqrt_f32", "v_sin_f32", "v_cos_f32")

def regs_of(tok):
    tok = tok.strip()
    m = re.fullmatch(r"-?\|?([vs])(\d+)\|?", tok)
    if m: return {(m.group(1), int(m.group(2)))}
    m = re.fullmatch(r"-?([vs])\[(\d+):(\d+)\]", tok)
    if m: return {(m.group(1), i) for i in range(int(m.group(2)), int(m.group(3)) + 1)}
    if tok == "vcc": return {("s", 106), ("s", 107)}
    if tok == "exec": return {("s", 126), ("s", 127)}
    if tok == "m0": return {("s", 124)}
    return set()

class Ins:
    def __init__(self, text):
        self.text = text
        t = text.split(";")[0].strip()
        self.op = t.split()[0] if t else ""
        rest = t[len(self.op):].strip()
        ops = [o.strip() for o in re.split(r",(?![^\[]*\])", rest)] if rest else []
        self.mods = ""
        if ops:
            parts = ops[-1].split(None, 1)
            ops[-1] = parts[0]
            self.mods = parts[1] if len(parts) > 1 else ""
        self.ops = ops
        op = self.op
        self.cls = "other"; self.dst = set(); self.src = set(); self.passes = 0
        self.srcC = set(); self.srcAB = set(); self.stdata = set()
        R = [regs_of(o) for o in ops]
        U = lambda L: set().union(*L) if L else set()
        if op.startswith("v_mfma"):
            self.cls = "mfma"; self.dst = R[0]; self.srcAB = R[1] | R[2]; self.srcC = R[3]; self.src = self.srcAB | self.srcC
            self.passes = 8 if "32x32" in op else 4
        elif op.startswith("v_"):
            self.cls = "valu"
            if op.startswith("v_permlane") and "swap" in op:
                self.dst = R[0] | R[1]; self.src = R[0] | R[1]
            elif op.startswith("v_cmp"):
                self.dst = R[0]; self.src = U(R[1:])
            elif op == "v_nop":
                pass
            else:
                self.dst = R[0]; self.src = U(R[1:])
                if op.startswith(("v_fmac", "v_dot2c", "v_writelane")) or "_dpp" in op or "d16" in op: self.src |= R[0]
                if op.startswith("v_cndmask") and len(ops) == 3: self.src |= regs_of("vcc")
            self.dpp = ("_dpp" in op) or ("row_" in self.mods) or ("wave_" in self.mods) or ("quad_perm" in self.mods)
        elif op.startswith("ds_"):
            self.cls = "ds"
            if op.startswith("ds_read"): self.dst = R[0]; self.src = U(R[1:])
            else: self.src = U(R)
            self.lds = "addtid" in op
        elif op.startswith(("buffer_", "global_")):
            self.cls = "vmem"
            lds = " lds" in (" " + self.mods)
            self.lds = lds
            if "_load" in op and not lds:
                self.dst = R[0]; self.src = U(R[1:])
                if "d16" in op: self.src |= R[0]
            elif "_store" in op:
                self.src = U(R)
                d = R[0] if op.startswith("buffer_") else R[1]
                if len(d) >= 3: self.stdata = d
            else:
                self.src = U(R)
        elif op.startswith("s_"):
            self.cls = "salu"
            if op.startswith(("s_load", "s_buffer_load", "s_memtime", "s_memrealtime")):
                self.cls = "smem"; self.dst = R[0]; self.src = U(R[1:])
            elif op.startswith(("s_cmp", "s_cbranch", "s_branch", "s_waitcnt", "s_nop", "s_barrier", "s_endpgm", "s_setprio", "s_sleep", "s_bitcmp")):
                self.src = U(R)
            else:
                self.dst = R[0]; self.src = U(R[1:])
                if "saveexec" in op: self.dst |= regs_of("exec")
    def states(self):
        if self.op == "s_nop": return int(self.ops[0]) + 1
        return 1

def V(x): return {r for r in x if r[0] == "v"}
def S(x): return {r for r in x if r[0] == "s"}

def need(prev, cur):
    n = 0
    pv = prev.cls == "valu"
    if pv and cur.cls == "mfma" and V(prev.dst) & cur.src: n = max(n, 2)
    if prev.cls == "mfma":
        big = 12 if prev.passes == 8 else 8
        if cur.cls == "valu" and prev.dst & (cur.src | cur.dst): n = max(n, big)
        if cur.cls in ("ds", "vmem") and prev.dst & (cur.src | cur.dst): n = max(n, big)
        if cur.cls == "mfma":
            if prev.dst & cur.srcAB: n = max(n, big)
            if prev.dst & cur.srcC and not (prev.dst == cur.srcC and prev.passes == cur.passes): n = max(n, big - 2)
            if prev.dst & cur.dst and not (prev.dst == cur.srcC): n = max(n, big)
        if cur.cls == "valu" and prev.srcC & cur.dst: n = max(n, 7 if prev.passes == 8 else 3)
    if pv and prev.op.replace("_e32", "").replace("_e64", "") in TRANS and cur.cls in ("valu",) and V(prev.dst) & cur.src: n = max(n, 1)
    if pv and cur.cls == "valu":
        if (getattr(cur, "dpp", False) or cur.op.startswith("v_permlane")) and V(prev.dst) & cur.src: n = max(n, 2)
        if cur.op.startswith(("v_readlane", "v_readfirstlane")) and V(prev.dst) & cur.src: n = max(n, 1)
        if S(prev.dst) & cur.src: n = max(n, 4 if cur.op.startswith(("v_readlane", "v_writelane")) else 2)
        if prev.op.startswith("v_dot") and V(prev.dst) & (cur.src | cur.dst) and prev.op != cur.op: n = max(n, 3)
    if pv and cur.cls == "vmem" and S(prev.dst) & cur.src: n = max(n, 5)
    if prev.cls == "salu" and ("s", 124) in prev.dst and cur.cls in ("vmem", "ds") and getattr(cur, "lds", False): n = max(n, 1)
    if prev.stdata and prev.stdata & cur.dst: n = max(n, 2 if cur.cls == "valu" else 1)
    return n

class Asm:
    def __init__(self):
        self.lines = []
        self.vm = 0; self.lg = 0
        self.uid = 0
    def e(self, text):
        for t in text.strip().split("\n"):
            t = t.strip()
            if not t or t.startswith(";"): continue
            if t.endswith(":"):
                self.lines.append(t); continue
            i = Ins(t)
            self.lines.append(i)
            i.cond = "cond" in t.split(";")[-1] if ";" in t else False
            if i.cls == "vmem" and not i.cond: self.vm += 1
            if i.cls == "ds": self.lg += 1
        return self
    __call__ = e
    def vmt(self): return self.vm
    def lgt(self): return self.lg
    def wait(self, vm=None, lg=None):
        s = []
        if vm is not None:
            n = self.vm - vm; assert 0 <= n, n
            s.append(f"vmcnt({min(n, 63)})")
        if lg is not None:
            n = self.lg - lg; assert n >= 0
            s.append(f"lgkmcnt({min(n, 15)})")
        if s: self.e("s_waitcnt " + " ".join(s))
    def label(self, base):
        self.uid += 1
        return f"L{base}_{self.uid}"
    def finish(self, check=True):
        out = []; hist = []
        vmq = []; lgq = []
        for ln in self.lines:
            if isinstance(ln, str):
                out.append(ln); continue
            req = 0; dist = 0
            for p in reversed(hist):
                r = need(p, ln) - dist
                if r > req: req = r
                dist += p.states()
                if dist > 24: break
            while req > 0:
                k = min(req, 8)
                nop = Ins(f"s_nop {k-1}"); out.append("    " + nop.text); hist.append(nop); req -= k
            if check:
                if ln.op == "s_waitcnt":
                    m = re.search(r"vmcnt\((\d+)\)", ln.text)
                    if m and getattr(ln, "cond", False):
                        while vmq and vmq[-1][3]: vmq.pop()
                    elif m:
                        n = int(m.group(1)); k = len(vmq); c = 0
                        while k > 0 and not (c == n and (not vmq[k-1][3] or True) and (c == n)):
                            if not vmq[k-1][3]: c += 1
                            k -= 1
                        vmq = vmq[k:]
                    m = re.search(r"lgkmcnt\((\d+)\)", ln.text)
                    if m:
                        n = int(m.group(1))
                        if n == 0: lgq = []
                        else:
                            ds = [x for x in lgq if x[1] != "smem"]; sm = [x for x in lgq if x[1] == "smem"]
                            lgq = sm + (ds[len(ds) - n:] if n < len(ds) else ds)
                else:
                    touched = ln.src | ln.dst
                    for q in (vmq, lgq):
                        for (d, c, t, _) in q:
                            if d & touched and not ("d16" in ln.op and ln.cls == "vmem"):
                                raise AssertionError(f"use of pending load result: '{ln.text}' vs '{t}'")
                    if ln.cls == "vmem": vmq.append((ln.dst, "vmem", ln.text, getattr(ln, "cond", False)))
                    if ln.cls in ("ds", "smem"): lgq.append((ln.dst, ln.cls, ln.text, False))
                    if ln.op in ("s_endpgm", "s_branch") and "keep" not in ln.text: vmq = []; lgq = []
            out.append("    " + ln.text); hist.append(ln)
        return "\n".join(out) + "\n"
```

```python
import sys, struct
sys.path.insert(0, "work")
from asmgen import Asm

NAME = "gated_mix__ssm_conv_s4__dense_activation_relu__prompt"
KN = NAME + "_kernel"
WS_E = 0; WS_FW = 0x8000; WS_FU = 0x10000; WS_FH = 0x18000; WS_G = 0x20000; WS_FA = 0x40000; FAS = 2688
VER = 4
WS_W2F = 0x100000; WS_UT = 0x300000; WS_AT = 0x600000; WS_HF = 0x900000; WS_SIZE = 0x1000000
WS_K = 0x1000000
WS_ST = 0x2000000
SPIN = 20000
def f32(x): return "0x%08x" % struct.unpack("<I", struct.pack("<f", x))[0]
LOG2E = 1.4426950408889634

sX, sW1, sWS, sOUT = "s[48:51]", "s[52:55]", "s[56:59]", "s[60:63]"
sW2 = "s[52:55]"; sGW = "s[64:67]"
TAG = "s4"
WSP = "s[96:97]"
DPP = "row_mask:0xf bank_mask:0xf"
VSTR = 12768; CPB = 3 * VSTR; CSTR = 12480; CPY = 4160; KXO = 4160

class Gen:
    def __init__(self, prof=False, dumpk=False, opts=()):
        self.fi = 0; self.a = Asm(); self.prof = prof; self.dumpk = dumpk; self.opts = set(opts)
        self.par = dict(o.split("=") for o in opts if "=" in o)
    def P(self, k, d): return int(self.par.get(k, d))
    def stamp(self, grp="c"):
        if not self.prof: return
        if grp != "*" and self.par.get("sg", "c") not in grp: return
        i = self.fi; self.fi += 1
        assert i < 16
        op = "s_memtime" if "cyc" in self.opts else "s_memrealtime"
        self.a(f"{op} s[98:99]\ns_waitcnt lgkmcnt(0)\ns_mov_b32 s{80+i}, s98")
    def end(self):
        a = self.a
        if self.prof:
            self.stamp("*")
            n = self.fi - 1
            self.fi = 0
            a(f"""s_lshl_b32 s5, s2, 2
                  s_add_u32 s5, s5, s3
                  s_lshl_b32 s5, s5, 7
                  s_add_u32 s5, s5, {WS_ST}
                  v_mov_b32 v2, s5""")
            for i in range(n + 1):
                a(f"v_mov_b32 v3, s{80+i}\nglobal_store_dword v2, v3, {WSP} offset:{4*i}")
            a(f"""v_mov_b32 v3, s100
                  global_store_dword v2, v3, {WSP} offset:72
                  v_mov_b32 v3, s101
                  global_store_dword v2, v3, {WSP} offset:68
                  v_mov_b32 v3, {n + 1}
                  global_store_dword v2, v3, {WSP} offset:64""")
        a("s_endpgm")
    def srd(self, d, p, n):
        self.a(f"s_mov_b32 s{d}, s{p}\ns_mov_b32 s{d+1}, s{p+1}\ns_mov_b32 s{d+2}, {n}\ns_mov_b32 s{d+3}, 0x20000")
    def kwait(self):
        a = self.a
        a("s_waitcnt lgkmcnt(0)")
        if self.prof: a("s_memrealtime s[98:99]\ns_waitcnt lgkmcnt(0)\ns_mov_b32 s101, s98")
    def wssrd(self):
        self.srd(56, 46, (WS_ST + 0x100000) if (self.prof or self.dumpk) else WS_SIZE)
        self.a(f"s_mov_b32 s96, s46\ns_mov_b32 s97, s47\ns_load_dword {TAG}, s[46:47], {WS_E}")
    def chk(self, vt, w):
        a = self.a
        if w == 1:
            a(f"v_cmp_ne_u32 vcc, {TAG}, v{vt}"); return
        for i in range(w): a(f"v_xor_b32 v{vt+i}, {TAG}, v{vt+i}")
        if w == 2: a(f"v_or_b32 v{vt}, v{vt}, v{vt+1}")
        else: a(f"v_or_b32 v{vt}, v{vt}, v{vt+1}\nv_or3_b32 v{vt}, v{vt}, v{vt+2}, v{vt+3}")
        a(f"v_cmp_ne_u32 vcc, 0, v{vt}")
    def pload(self, vaddr, vt, soff, w, cond=True):
        sfx = {1: "dword", 2: "dwordx2", 4: "dwordx4"}[w]
        r = f"v{vt}" if w == 1 else f"v[{vt}:{vt+w-1}]"
        self.a(f"buffer_load_{sfx} {r}, v{vaddr}, {sWS}, {soff} offen sc1" + (" ; cond" if cond else ""))
    def poll(self, vaddr, vt, soff="0", w=1, first_loaded=False, sleep=0):
        a = self.a
        L = a.label("poll"); Dn = a.label("pdone")
        if first_loaded:
            self.chk(vt, w); a(f"s_cbranch_vccz {Dn}")
        a(f"s_mov_b32 s15, {SPIN}\n{L}:")
        if sleep: a(f"s_sleep {sleep}")
        self.pload(vaddr, vt, soff, w)
        a("s_waitcnt vmcnt(0) ; cond")
        self.chk(vt, w)
        a(f"""s_cbranch_vccz {Dn}
              s_sub_u32 s15, s15, 1
              s_cbranch_scc0 {L}
              {Dn}:""")
    def sloads(self, srcs, base):
        r = base
        for (so, imm, n) in srcs:
            self.a(f"s_load_dwordx{n} s[{r}:{r+n-1}], {WSP}, {so} " + (f"offset:{imm} " if imm else "") + "glc")
            r += n
    def spoll(self, srcs, base=16, sleep=0, use=None, first_loaded=False, prio=None):
        a = self.a
        Lp = a.label("sp"); Ld = a.label("sd"); Lc = a.label("sc")
        tot = sum(n for (_, _, n) in srcs)
        a(f"s_mov_b32 s15, {SPIN}")
        if first_loaded: a(f"s_branch {Lc} ; keep")
        a(f"{Lp}:")
        self.sloads(srcs, base)
        a("s_waitcnt lgkmcnt(0)")
        if first_loaded: a(f"{Lc}:")
        if use is None:
            for i in range(base, base + tot): a(f"s_xor_b32 s{i}, s{i}, {TAG}")
            for i in range(base + 2, base + tot, 2): a(f"s_or_b64 s[{base}:{base+1}], s[{base}:{base+1}], s[{i}:{i+1}]")
        else:
            for i in use: a(f"s_xor_b32 s{base+i}, s{base+i}, {TAG}")
            for i in use[1:]: a(f"s_or_b32 s{base+use[0]}, s{base+use[0]}, s{base+i}")
        a(f"s_cbranch_scc0 {Ld}")
        if prio is not None: a("s_setprio 0")
        if sleep: a(f"s_sleep {sleep}")
        a(f"""s_sub_u32 s15, s15, 1
              s_cbranch_scc0 {Lp}
              {Ld}:""")
        if prio is not None: a(f"s_setprio {prio}")
    def flag(self, soff_reg, vt, mask=1, stride=128, pre=False):
        a = self.a
        a(f"v_mov_b32 v{vt}, {TAG}")
        if not pre: a(f"v_mul_u32_u24 v{vt+1}, {stride}, v1")
        if mask is not None: a(f"s_mov_b32 exec_lo, {hex(mask)}\ns_mov_b32 exec_hi, 0")
        a(f"""buffer_store_dword v{vt}, v{vt+1}, {sWS}, {soff_reg} offen sc1 ; cond
              s_mov_b64 exec, -1""")

    def prologue(self):
        a = self.a
        if self.prof: a("s_memrealtime s[100:101]")
        a(f"""s_cmp_ge_u32 s2, 512
              s_cbranch_scc1 Lexit
              s_load_dwordx16 s[16:31], s[0:1], 0
              s_load_dwordx16 s[32:47], s[0:1], 64
              v_lshrrev_b32 v2, 6, v0
              v_and_b32 v1, 63, v0
              v_readfirstlane_b32 s3, v2""")
        if "cpf" in self.opts:
            a(f"""s_lshr_b32 s5, s2, 3
                  s_cmp_ge_u32 s5, {self.P('cpf_n', 7)}
                  s_cbranch_scc1 Lnopf
                  s_cmp_lg_u32 s3, 0
                  s_cbranch_scc1 Lnopf
                  s_getpc_b64 s[6:7]
                  s_lshl_b32 s5, s5, 13
                  v_lshlrev_b32 v2, 7, v1
                  v_add_u32 v2, s5, v2
                  global_load_dword v255, v2, s[6:7] ; cond
                  Lnopf:""")
        a(("s_cmp_ge_u32" if "gfirst" in self.opts else "s_cmp_lt_u32") + " s2, 256\ns_cbranch_scc1 " + ("Lexit" if "noC" in self.opts else "LC"))
        if "noG" in self.opts: a("s_branch Lexit")

    def role_g(self):
        a = self.a
        noC = "noC" in self.opts
        if self.P("gp1", 3): a(f"s_setprio {self.P('gp1', 3)}")
        a(f"""s_and_b32 s5, s2, 7
              s_bfe_u32 s6, s2, 0x50003
              s_and_b32 s7, s6, 3           ; i
              s_lshr_b32 s8, s6, 2          ; cb2 = j
              s_lshr_b32 s9, s5, 1
              s_lshl_b32 s9, s9, 2
              s_add_u32 s9, s9, s7          ; rb
              s_and_b32 s13, s5, 1
              s_lshl_b32 s10, s13, 3
              s_add_u32 s10, s10, s8        ; cb
              s_lshl_b32 s11, s5, 2
              s_add_u32 s11, s11, s7        ; rb2
              """)
        stag = self.par.get("stag", "h5")
        if stag == "full":
            a("""s_mul_i32 s12, s7, 5
              s_add_u32 s12, s12, 1
              s_lshr_b32 s12, s12, 1
              s_mul_i32 s13, s13, 5
              s_add_u32 s12, s12, s13
              s_add_u32 s12, s12, s8
              s_sub_u32 s13, s12, 10
              s_cmp_ge_u32 s12, 10
              s_cselect_b32 s12, s13, s12
              s_sub_u32 s13, s12, 10
              s_cmp_ge_u32 s12, 10
              s_cselect_b32 s12, s13, s12""")
        elif stag == "h5": a("s_add_u32 s12, s7, s8\ns_and_b32 s12, s12, 1\ns_mul_i32 s12, s12, 5")
        elif stag == "h3": a("s_add_u32 s12, s7, s8\ns_and_b32 s12, s12, 3")
        elif stag == "h4": a("s_add_u32 s12, s7, s8\ns_and_b32 s12, s12, 3\ns_mul_i32 s12, s12, 5\ns_lshr_b32 s12, s12, 1")
        else: a("s_mov_b32 s12, 0")
        a(f"""
              s_lshl_b32 s13, s9, 2
              s_add_u32 s13, s13, s3
              s_mul_i32 s74, s13, {32*1280}
              s_add_u32 s75, s74, 1280       ; x wrap
              s_lshl_b32 s13, s12, 7
              s_add_u32 s72, s74, s13        ; x ptr
              s_mul_i32 s76, s10, 192        ; w1 base
              s_add_u32 s77, s76, 1966080
              s_mul_i32 s13, s12, 196608
              s_add_u32 s73, s76, s13        ; w1 ptr
              s_lshl_b32 s78, s3, 12
              s_mul_i32 s79, s3, 3072
              s_add_u32 s79, s79, 32768
              """)
        XO, WO, XR, AR = 140, 144, 147, 151
        a(f"""v_lshrrev_b32 v3, 3, v1
              v_mul_u32_u24 v3, 1280, v3
              v_and_b32 v4, 7, v1
              v_lshrrev_b32 v5, 4, v1
              v_xor_b32 v4, v4, v5
              v_lshl_add_u32 v{XO}, v4, 4, v3
              v_xor_b32 v4, 4, v4
              v_lshl_add_u32 v{XO+1}, v4, 4, v3
              v_add_u32 v{XO+1}, {10240-1024}, v{XO+1}
              v_add_u32 v{XO+2}, {2*(10240-1024)}, v{XO}
              v_add_u32 v{XO+3}, {2*(10240-1024)}, v{XO+1}
              s_mul_i32 s13, s3, 192""")
        for j in range(3):
            a(f"""v_add_u32 v3, s13, v1
                  v_add_u32 v3, {64*j}, v3
                  v_mul_u32_u24 v4, 5462, v3
                  v_lshrrev_b32 v4, 16, v4
                  v_mul_u32_u24 v5, 12, v4
                  v_sub_u32 v5, v3, v5
                  v_mul_u32_u24 v4, 3072, v4
                  v_lshl_add_u32 v{WO+j}, v5, 4, v4""")
            if j: a(f"v_subrev_u32 v{WO+j}, {1024*j}, v{WO+j}")
        self.kwait()
        self.srd(48, 16, 2621440); self.srd(52, 36, 1966080)
        tx = {}; tw = {}
        pol = self.par.get("pol", "")
        def dma_x(s):
            L = [f"s_add_u32 m0, s78, {(s % 2) * 16384}\nbuffer_load_dwordx4 v{XO}, {sX}, s72 offen {pol} lds"]
            for p in range(1, 4):
                L.append(f"buffer_load_dwordx4 v{XO+p}, {sX}, s72 offen offset:{1024*p} {pol} lds")
            def last():
                a(L[3]); tx[s] = a.vmt()
                a("s_add_u32 s72, s72, 128\ns_cmp_eq_u32 s72, s75\ns_cselect_b32 s72, s74, s72")
            return L[:3] + [last]
        def dma_w(s):
            L = [f"s_add_u32 m0, s79, {(s % 4) * 12288}\nbuffer_load_dwordx4 v{WO}, {sW1}, s73 offen {pol} lds"]
            for p in range(1, 3):
                L.append(f"buffer_load_dwordx4 v{WO+p}, {sW1}, s73 offen offset:{1024*p} {pol} lds")
            def last():
                a(L[2]); tw[s] = a.vmt()
                a("s_add_u32 s73, s73, 196608\ns_cmp_eq_u32 s73, s77\ns_cselect_b32 s73, s76, s73")
            return L[:2] + [last]
        def run(items):
            for it in items:
                if callable(it): it()
                elif it: a(it)
        run(dma_w(0)); run(dma_x(0)); run(dma_w(1)); run(dma_x(1)); run(dma_w(2))
        self.wssrd(); self.srd(60, 42, 2621440); self.srd(64, 40, 1280)
        a(f"""v_and_b32 v3, 31, v1
              v_lshrrev_b32 v4, 1, v3
              v_and_b32 v4, 7, v4
              v_lshrrev_b32 v5, 5, v1
              v_xor_b32 v4, v4, v5
              v_lshlrev_b32 v3, 7, v3
              v_add_u32 v3, s78, v3""")
        for j in range(4):
            a(f"v_xor_b32 v6, {2*j}, v4\nv_lshl_add_u32 v{XR+j}, v6, 4, v3")
        a(f"""v_lshrrev_b32 v5, 5, v1
              v_lshlrev_b32 v3, 3, v5
              v_bfe_u32 v4, v1, 2, 2
              v_add_u32 v3, v3, v4
              v_mul_u32_u24 v3, 192, v3
              v_bfe_u32 v4, v1, 4, 1
              v_lshl_add_u32 v3, v4, 5, v3
              v_and_b32 v4, 3, v1
              v_lshl_add_u32 v3, v4, 3, v3
              v_add_u32 v{AR}, 32768, v3
              v_lshlrev_b32 v2, 4, v1""")
        rm = self.P("rmode", 1)
        if rm == 0:
            a(f"""s_mul_i32 s70, s8, 3
              s_lshr_b32 s70, s70, 1
              s_mul_i32 s13, s7, 3
              s_add_u32 s70, s70, s13
              s_sub_u32 s13, s70, 12
              s_cmp_ge_u32 s70, 12
              s_cselect_b32 s70, s13, s70""")
        elif rm == 1: a("s_add_u32 s70, s7, s8\ns_and_b32 s70, s70, 1\ns_mul_i32 s70, s70, 6")
        elif rm == 2: a("s_mov_b32 s70, 0")
        elif rm == 3: a("s_and_b32 s70, s8, 1\ns_mul_i32 s70, s70, 6")
        elif rm == 4: a("s_and_b32 s70, s8, 3\ns_mul_i32 s70, s70, 3")
        a(f"""s_mul_i32 s6, s11, 48
              s_mul_i32 s7, s3, 12
              s_add_u32 s6, s6, s7
              s_lshl_b32 s6, s6, 12
              s_add_u32 s68, s6, {WS_HF}
              s_mul_i32 s13, s8, 48
              s_add_u32 s7, s7, s13
              s_mul_i32 s7, s7, 5120
              s_add_u32 s69, s7, {WS_W2F}
              s_mul_i32 s5, s70, 5120         ; r0 * 5120""")
        GX, GWT, GT = 108, 118, 152
        a(f"""s_lshl_b32 s13, s9, 2
              s_add_u32 s13, s13, s3
              s_lshl_b32 s13, s13, 4
              s_add_u32 s13, s13, s10
              s_lshl_b32 s14, s13, 4
              s_add_u32 s71, s14, {WS_G}
              s_mul_i32 s12, s13, 2560
              v_mul_u32_u24 v5, 40, v1
              v_and_b32 v4, 31, v1
              v_mul_u32_u24 v6, 40, v4
              s_lshl_b32 s14, s8, 5
              s_add_u32 s14, s14, s11
              s_lshl_b32 s14, s14, 2
              s_add_u32 s14, s14, s3
              s_lshl_b32 s14, s14, 5
              s_add_u32 s24, s14, {WS_FW}""")
        gl = [f"buffer_load_dwordx4 v[{GX}:{GX+3}], v5, {sX}, s12 offen",
              f"buffer_load_dwordx4 v[{GX+4}:{GX+7}], v5, {sX}, s12 offen offset:16",
              f"buffer_load_dwordx2 v[{GX+8}:{GX+9}], v5, {sX}, s12 offen offset:32",
              f"buffer_load_dwordx2 v[{GWT}:{GWT+1}], v6, {sGW}, 0 offen",
              f"buffer_load_dwordx4 v[{GWT+2}:{GWT+5}], v6, {sGW}, 0 offen offset:8",
              f"buffer_load_dwordx4 v[{GWT+6}:{GWT+9}], v6, {sGW}, 0 offen offset:24"]
        ACC = 176; XF = (224, 240); AF = 152
        def rd_x1(s, j):
            r = XF[s % 2] + 4 * j
            a(f"ds_read_b128 v[{r}:{r+3}], v{XR+j} offset:{(s % 2) * 16384}")
            return a.lgt()
        def jf(m):
            s, idx = divmod(m, 12)
            return (s, idx // 3, idx % 3) if s < 9 else (s, idx % 4, idx // 4)
        LA = 6
        lf = {}
        def rd_f(m):
            s, j, ft = jf(m)
            for h in range(2):
                r = AF + 4 * (m % LA) + 2 * h
                a(f"ds_read_b64_tr_b16 v[{r}:{r+1}], v{AR} offset:{(s % 4) * 12288 + (16*j + 4*h) * 192 + 64*ft}")
            lf[m] = a.lgt()
        g0, g1, t0 = GT + 2, GT + 3, GT + 4
        gate = [f"v_mov_b32 v{g0}, 0", f"v_mov_b32 v{g1}, 0", "s_mov_b32 s26, 0xffff0000"]
        for i in range(0, 10, 2):
            for k in range(2):
                x, w, t = GX + i + k, GWT + i + k, t0 + 4 * k
                gate += [f"v_lshlrev_b32 v{t}, 16, v{x}", f"v_and_b32 v{t+1}, s26, v{x}",
                         f"v_lshlrev_b32 v{t+2}, 16, v{w}", f"v_and_b32 v{t+3}, s26, v{w}"]
            for k in range(2):
                t = t0 + 4 * k
                gate += [f"v_mul_f32 v{t}, v{t}, v{t+2}", f"v_mul_f32 v{t+1}, v{t+1}, v{t+3}"]
            for k in range(2):
                t = t0 + 4 * k
                gate += [f"v_cvt_pk_bf16_f32 v{t}, 0, v{t}", f"v_cvt_pk_bf16_f32 v{t+1}, 0, v{t+1}"]
            for k in range(2):
                t = t0 + 4 * k
                gate += [f"v_add_f32 v{g0}, v{g0}, v{t}", f"v_add_f32 v{g1}, v{g1}, v{t+1}"]
        gate += [f"v_add_f32 v{g0}, v{g0}, v{g1}", f"v_and_b32 v{t0}, 31, v1", f"v_lshrrev_b32 v{t0+1}, 5, v1",
                 f"v_add_f32_dpp v{g0}, v{g0}, v{g0} row_shr:1 row_mask:0xf bank_mask:0xf bound_ctrl:0",
                 f"v_lshlrev_b32 v{t0+1}, 3, v{t0+1}", f"v_cmp_eq_u32 vcc, 31, v{t0}",
                 f"v_add_f32_dpp v{g0}, v{g0}, v{g0} row_shr:2 row_mask:0xf bank_mask:0xf bound_ctrl:0",
                 f"v_cndmask_b32 v{t0+1}, -1, v{t0+1}, vcc", f"v_mov_b32 v{g1}, {TAG}",
                 f"v_add_f32_dpp v{g0}, v{g0}, v{g0} row_shr:4 row_mask:0xf bank_mask:0xf bound_ctrl:0",
                 f"v_add_f32_dpp v{g0}, v{g0}, v{g0} row_shr:8 row_mask:0xf bank_mask:0xf bound_ctrl:0",
                 f"v_add_f32_dpp v{g0}, v{g0}, v{g0} row_bcast:15 row_mask:0xa bank_mask:0xf",
                 f"v_cvt_pk_bf16_f32 v{g0}, 0, v{g0}",
                 f"v_mul_f32 v{g0}, {f32(-LOG2E)}, v{g0}",
                 f"v_exp_f32 v{g0}, v{g0}",
                 f"v_add_f32 v{g0}, 1.0, v{g0}",
                 f"v_rcp_f32 v{g0}, v{g0}",
                 f"v_cvt_pk_bf16_f32 v{g0}, 0, v{g0}",
                 f"buffer_store_dwordx2 v[{g0}:{g1}], v{t0+1}, {sWS}, s71 offen sc1"]
        RP = [0, 1, 6, 7, 8, 9]; LP = [2, 3, 4, 5]; SP = [10, 11]
        Wr = {}; Wt = {}; Hr = {}; Ht = {}; Wl = {}
        def woff(p, d):
            return f"""s_add_u32 {d}, s5, {p * 5120}
                       s_cmp_ge_u32 {d}, 61440
                       s_cselect_b32 s15, 61440, 0
                       s_sub_u32 {d}, {d}, s15
                       s_add_u32 {d}, {d}, s69"""
        def ld_w(p, mt, r, sreg):
            def f():
                if mt == 0: a(woff(p, sreg))
                if mt == 4: a(f"s_add_u32 {sreg}, {sreg}, 4096")
                Wr[(p, mt)] = r
                a(f"buffer_load_dwordx4 v[{r}:{r+3}], v2, {sWS}, {sreg} offen offset:{1024*(mt % 4)} sc1")
                Wt[(p, mt)] = a.vmt()
            return f
        wpre = [ld_w(p, mt, 8 + 4 * (5 * k + mt), "s25") for k, p in enumerate(RP) for mt in range(5)]
        wlast = wpre[25:]; wpre = wpre[:25]
        self.stamp("1")
        a.wait(vm=tx[0])
        self.stamp("c1")
        for j in range(4): lx = rd_x1(0, j)
        a("s_barrier")
        self.stamp("c1d")
        for m in range(LA): rd_f(m)
        S_W0 = self.P("sw0", 7); WGAP = self.P("wgap", 2); NPRE = self.P("npre", 16)
        BAR = self.P("bar", 6)
        assert BAR <= 7
        HPK = (128, 136, 144)
        def pack(ft):
            L = []
            for c in range(2):
                r = HPK[ft] + 4 * c
                for i in range(4):
                    s0 = ACC + 16 * ft + 8 * c + 2 * i
                    L.append(f"v_cvt_pk_bf16_f32 v{r+i}, v{s0}, v{s0+1}")
                for i in range(4): L.append(f"v_pk_max_i16 v{r+i}, v{r+i}, 0")
                L.append(f"buffer_store_dwordx4 v[{r}:{r+3}], v3, {sWS}, s13 offen offset:{256*c} sc1")
            if ft < 2: L.append("s_add_u32 s13, s13, 4096")
            return L
        FWS = [("s24", 0, 8)]
        def sync_point(s):
            if 3 <= s <= 6: self.stamp("3")
            a.wait(vm=max(tx[s + 1], tw[s + 1]))
            if 3 <= s <= 6: self.stamp("3")
            if s == S_W0 - 1:
                a(f"s_waitcnt lgkmcnt(0)\ns_add_u32 {TAG}, {TAG}, 1")
            a("s_barrier")
            self.stamp("1" + ("3" if 3 <= s <= 6 else "") + ("d" if s in (0, 8) else ""))
            if s == S_W0 - 2: self.sloads(FWS, 16)
            if s == S_W0 - 1 and not noC: self.spoll(FWS, 16, use=[0, 1, 2, 3, 4, 5], first_loaded=True, sleep=self.P("wsleep", 2), prio=self.P("gp1", 3))
        hst = f"""s_lshl_b32 s13, s9, 1
              s_lshr_b32 s6, s3, 1
              s_add_u32 s13, s13, s6          ; rb2'
              s_lshl_b32 s7, s13, 5
              s_lshr_b32 s6, s10, 2
              s_add_u32 s7, s7, s6
              s_lshl_b32 s7, s7, 5            ; flag line of replica 0
              s_mul_i32 s13, s13, 48
              s_mul_i32 s6, s10, 3
              s_add_u32 s13, s13, s6
              s_lshl_b32 s13, s13, 12
              s_and_b32 s6, s3, 1
              s_lshl_b32 s14, s6, 2
              s_add_u32 s7, s7, s14
              s_lshl_b32 s6, s6, 11
              s_add_u32 s13, s13, s6
              s_add_u32 s13, s13, {WS_HF}
              s_and_b32 s6, s10, 3
              s_lshl_b32 s6, s6, 3
              s_add_u32 s7, s7, s6
              s_add_u32 s7, s7, {WS_FH}      ; FH flag offset
              v_bfe_u32 v3, v1, 4, 1
              v_lshlrev_b32 v3, 10, v3
              v_lshrrev_b32 v4, 5, v1
              v_lshl_add_u32 v3, v4, 9, v3
              v_and_b32 v4, 15, v1
              v_lshl_add_u32 v3, v4, 4, v3""".split("\n")
        ex = []; xr = []; fill = []; npre = 0; sincew = 99
        for m in range(120):
            s, j, ft = jf(m); idx = m % 12
            if idx == 0:
                a.wait(lg=max(lx, lf[m]))
                if s + 2 < 10: ex += dma_x(s + 2)
                if s == 8: ex += gl; fill += hst
            else: a.wait(lg=lf[m])
            if m == 119: a("s_barrier")
            d = ACC + 16 * ft
            c = "0" if (s == 0 and j == 0) else f"v[{d}:{d+15}]"
            af = AF + 4 * (m % LA); xf = XF[s % 2] + 4 * j
            a(f"v_mfma_f32_32x32x16_bf16 v[{d}:{d+15}], v[{af}:{af+3}], v[{xf}:{xf+3}], {c}")
            if idx + 1 == BAR and s < 9:
                sync_point(s)
                xr = [(s + 1, jj) for jj in range(4)]
                if s + 3 < 10:
                    w3 = dma_w(s + 3); ex += [None, w3[0], None, w3[1], None, w3[2]]
            if m + LA < 120: rd_f(m + LA)
            if xr: lx = rd_x1(*xr.pop(0))
            if s == 9 and idx == 5: fill += pack(0)
            if s == 9 and idx == 9: fill += pack(1)
            sincew += 1
            it = ex.pop(0) if ex else None
            if it is not None: run([it])
            elif s >= S_W0 and npre < NPRE and sincew >= WGAP and not (s == 9 and idx >= 5):
                run([wpre.pop(0)]); npre += 1; sincew = 0
            n = 5 if s == 9 else 3
            run(fill[:n]); fill = fill[n:]
        assert not [e for e in ex if e is not None]
        tg = a.vmt()
        self.stamp("d")
        run(fill)
        self.stamp("c1d")
        run(pack(2))
        th = a.vmt()
        if self.P("gp2", 1) != self.P("gp1", 3): a(f"s_setprio {self.P('gp2', 1)}")
        dl = []
        for k, p in enumerate(LP):
            for mt in range(5):
                def f(k=k, p=p, mt=mt):
                    if mt == 0:
                        a(woff(p, "s14"))
                        if k < 3: a(f"s_mul_i32 s6, s3, 15360\ns_add_u32 m0, s6, {5120 * k}")
                        else: a(f"s_mul_i32 s6, s3, 5120\ns_add_u32 m0, s6, 61440")
                    if mt == 4: a(f"s_add_u32 s14, s14, 4096\ns_add_u32 m0, m0, 4096")
                    a(f"buffer_load_dwordx4 v2, {sWS}, s14 offen offset:{1024*(mt % 4)} sc1 lds")
                    Wl[(p, mt)] = a.vmt()
                dl.append(f)
        rest = wpre + dl
        nb = self.P("nb", 10)
        a.wait(vm=tg)
        per = max(1, len(gate) // (nb + 1))
        while gate:
            run(gate[:per]); gate = gate[per:]
            if nb and rest and gate: run([rest.pop(0)]); nb -= 1
        a.wait(vm=th)
        self.flag("s7", 4, 0xff)
        self.stamp("c1d")
        run(rest); run(wlast)
        for i in range(4):
            a(f"""s_add_u32 s6, s3, {i + 1}
                  s_and_b32 s6, s6, 3
                  s_lshl_b32 s6, s6, 10
                  v_add_u32 v{4+i}, s6, v2""")
        a(f"""s_lshl_b32 s13, s70, 12
              s_add_u32 s72, s68, s13         ; h ptr
              s_add_u32 s74, s68, {12*4096}
              s_mul_i32 s6, s3, 15360
              v_add_u32 v3, s6, v2
              s_mul_i32 s6, s3, 5120
              s_add_u32 s6, s6, 61440
              v_add_u32 v0, s6, v2
              s_lshl_b32 s13, s11, 3
              s_add_u32 s13, s13, s8
              s_lshl_b32 s13, s13, 2
              s_add_u32 s13, s13, s3
              s_lshl_b32 s13, s13, 5
              s_add_u32 s13, s13, {WS_FH}""")
        self.spoll([("s13", 0, 8)], sleep=self.P("hsleep", 1), prio=self.P("gp2", 1))
        self.stamp("c2d")
        A2 = 176
        def ld_h(p, i, r):
            Hr[(p, i)] = r
            a(f"buffer_load_dwordx4 v[{r}:{r+3}], v{4+i}, {sWS}, s72 offen sc1")
            Ht[(p, i)] = a.vmt()
            if i == 3: a("s_add_u32 s72, s72, 4096\ns_cmp_eq_u32 s72, s74\ns_cselect_b32 s72, s68, s72")
        for p in range(3):
            for i in range(4): ld_h(p, i, 128 + 4 * (4 * p + i))
        GQ = [("h", p, i) for p in range(3, 9) for i in range(4)] + [("s", 10, mt) for mt in range(5)] + \
             [("h", 9, i) for i in range(4)] + [("s", 11, mt) for mt in range(5)] + \
             [("h", p, i) for p in (10, 11) for i in range(4)]
        Lt = {}
        spare = []
        def freed(r, p, isw, mt=None):
            if isw and (p + 1) in LP:
                k = LP.index(p + 1)
                a.wait(vm=Wl[(p + 1, mt)])
                if k < 3: a(f"ds_read_b128 v[{r}:{r+3}], v3 offset:{5120*k + 1024*mt}")
                else: a(f"ds_read_b128 v[{r}:{r+3}], v0 offset:{1024*mt}")
                Wr[(p + 1, mt)] = r; Lt[(p + 1, mt)] = a.lgt()
            elif GQ:
                kind, pp, x = GQ.pop(0)
                if kind == "h": ld_h(pp, x, r)
                else: ld_w(pp, x, r, "s14")()
            else: spare.append(r)
        def mf(p, mt, i):
            d = A2 + (i * 5 + mt) * 4
            c = "0" if p == 0 else f"v[{d}:{d+3}]"
            w, h = Wr[(p, mt)], Hr[(p, i)]
            a(f"v_mfma_f32_16x16x32_bf16 v[{d}:{d+3}], v[{w}:{w+3}], v[{h}:{h+3}], {c}")
        def need_w(p, mt, also=None):
            if p in LP:
                a.wait(vm=also, lg=Lt[(p, mt)])
            else:
                a.wait(vm=max(Wt[(p, mt)], also or 0))
        for p in range(9):
            for mt in range(5):
                if mt == 0:
                    for i in range(4):
                        need_w(p, mt, Ht[(p, i)]); mf(p, mt, i)
                else:
                    need_w(p, mt)
                    for i in range(4): mf(p, mt, i)
                freed(Wr[(p, mt)], p, True, mt)
            for i in range(4): freed(Hr[(p, i)], p, False)
            self.stamp("2")
            if p == 7:
                assert not GQ
                T = spare.pop(0); GV = spare.pop(0)
                a(f"""s_mul_i32 s6, s11, {FAS}
                      s_mul_i32 s12, s8, 320
                      s_add_u32 s12, s12, s6
                      s_add_u32 s12, s12, {WS_FA}
                      v_min_u32 v{T}, 39, v1
                      v_lshlrev_b32 v{T}, 3, v{T}
                      s_lshl_b32 s13, s11, 2
                      s_add_u32 s13, s13, s3
                      s_lshl_b32 s13, s13, 7
                      s_add_u32 s77, s13, {WS_G}
                      v_and_b32 v{T+1}, 15, v1
                      v_lshlrev_b32 v{T+1}, 3, v{T+1}
                      buffer_load_dwordx2 v[{GV}:{GV+1}], v{T+1}, {sWS}, s77 offen sc1""")
                self.pload(T, T + 2, "s12", 2, cond=False)
                tfa = a.vmt()
                a(f"""s_mul_i32 s13, s8, 80
                      s_lshl_b32 s6, s3, 4
                      s_add_u32 s13, s13, s6
                      s_lshl_b32 s13, s13, 12
                      s_lshl_b32 s6, s11, 7
                      s_add_u32 s13, s13, s6
                      s_add_u32 s73, s13, {WS_AT}
                      v_lshrrev_b32 v{GV+2}, 3, v1
                      v_lshlrev_b32 v{GV+2}, 12, v{GV+2}
                      v_and_b32 v{GV+3}, 7, v1
                      v_lshl_add_u32 v{GV+2}, v{GV+3}, 4, v{GV+2}
                      s_mul_i32 s75, s3, 5120
                      s_add_u32 s75, s75, 61440""")
        def at_dma():
            Lk = a.label("skipd")
            a(f"""s_mov_b32 m0, s75
                  s_add_u32 s13, s73, {8*4096 - 1024}
                  buffer_load_dwordx4 v{GV+2}, {sWS}, s73 offen sc1 lds ; cond
                  buffer_load_dwordx4 v{GV+2}, {sWS}, s13 offen offset:1024 sc1 lds ; cond
                  s_cmp_lg_u32 s3, 0
                  s_cbranch_scc1 {Lk}
                  s_add_u32 s13, s73, {64*4096 - 2048}
                  s_add_u32 s14, s73, {72*4096 - 3072}
                  buffer_load_dwordx4 v{GV+2}, {sWS}, s13 offen offset:2048 sc1 lds ; cond
                  buffer_load_dwordx4 v{GV+2}, {sWS}, s14 offen offset:3072 sc1 lds ; cond
                  {Lk}:""")
        a.wait(vm=tfa)
        Lna = a.label("noat")
        a("s_mov_b32 s76, 0")
        if not noC:
            self.chk(T + 2, 2)
            a(f"s_cbranch_vccnz {Lna}")
        at_dma()
        a(f"s_mov_b32 s76, 1\n{Lna}:")
        self.stamp("c2")
        fill = []
        for i in range(4):
            for p in (9, 10, 11):
                for mt in range(5):
                    mf(p, mt, i)
                    if fill and (p, mt) != (9, 0) and mt % 2 == 1: a(fill.pop(0))
            assert not fill
            if i < 3:
                for mt in range(5):
                    d = A2 + (i * 5 + mt) * 4
                    fill.append(f"ds_write_b128 v3, v[{d}:{d+3}] offset:{5120*i + 1024*mt}")
        self.stamp("2")
        Lha = a.label("hasat")
        a(f"s_cmp_eq_u32 s76, 1\ns_cbranch_scc1 {Lha}")
        self.poll(T, T + 2, soff="s12", w=2)
        at_dma()
        a(f"{Lha}:")
        Lg = a.label("gp"); Lgd = a.label("gd")
        a(f"""s_mov_b32 s15, {SPIN}
              {Lg}:
              v_cmp_ne_u32 vcc, {TAG}, v{GV+1}
              s_cbranch_vccz {Lgd}
              buffer_load_dwordx2 v[{GV}:{GV+1}], v{T+1}, {sWS}, s77 offen sc1 ; cond
              s_waitcnt vmcnt(0) ; cond
              s_sub_u32 s15, s15, 1
              s_cbranch_scc0 {Lg}
              {Lgd}:""")
        for i in range(3):
            a(f"""s_sub_u32 s6, s3, {i + 1}
                  s_and_b32 s6, s6, 3
                  s_mul_i32 s6, s6, 15360
                  s_add_u32 s6, s6, {5120 * i}
                  v_add_u32 v{4+i}, s6, v2""")
        a(f"""v_lshrrev_b32 v7, 2, v1
              v_lshlrev_b32 v7, 7, v7
              v_and_b32 v0, 3, v1
              v_lshl_add_u32 v7, v0, 3, v7
              s_lshl_b32 s13, s3, 5
              s_add_u32 s13, s13, 61440
              v_add_u32 v7, s13, v7
              s_waitcnt vmcnt(0) lgkmcnt(0)
              s_barrier""")
        self.stamp("c2")
        OWN = A2 + 60
        pool = [r for r in range(8, 176, 4) if r not in (GV,)]
        RD = {}
        AA = [pool.pop(0) for _ in range(3)]
        aa = lambda mt: AA[mt // 2] + 2 * (mt % 2)
        for mt in range(5):
            a(f"ds_read_b64_tr_b16 v[{aa(mt)}:{aa(mt)+1}], v7 offset:{5120*mt if mt < 4 else 2048}")
        tA = a.lgt(); tR = {}
        def rdp(i):
            for mt in range(5):
                r = pool.pop(0); RD[(i, mt)] = r
                a(f"ds_read_b128 v[{r}:{r+3}], v{4+i} offset:{1024*mt}")
            tR[i] = a.lgt()
        rdp(0); rdp(1)
        G = GV; OM = GV + 2
        a(f"""v_mov_b32 v{G+1}, v{G}
              v_sub_f32 v{OM}, 1.0, v{G}
              s_mov_b32 s13, 0xffff0000
              v_cvt_pk_bf16_f32 v{OM}, 0, v{OM}""")
        a.wait(lg=tA); rdp(2)
        a(f"v_mov_b32 v{OM+1}, v{OM}")
        GA = [pool.pop(0) for _ in range(5)]
        for mt in range(5):
            r = GA[mt]
            for i in range(2):
                a(f"v_lshlrev_b32 v{r+2*i}, 16, v{aa(mt)+i}\nv_and_b32 v{r+2*i+1}, s13, v{aa(mt)+i}")
            for i in range(2):
                a(f"v_pk_mul_f32 v[{r+2*i}:{r+2*i+1}], v[{r+2*i}:{r+2*i+1}], v[{G}:{G+1}]")
            for i in range(4): a(f"v_cvt_pk_bf16_f32 v{r+i}, 0, v{r+i}")
        for i in range(3):
            a.wait(lg=tR[i])
            for mt in range(5):
                for k in (0, 2):
                    o = OWN + 4 * mt + k; r = RD[(i, mt)] + k
                    a(f"v_pk_add_f32 v[{o}:{o+1}], v[{o}:{o+1}], v[{r}:{r+1}]")
        a(f"""s_lshl_b32 s13, s11, 2
              s_add_u32 s13, s13, s3
              s_mul_i32 s13, s13, {16*1280}
              s_mul_i32 s14, s8, 160
              s_add_u32 s13, s13, s14
              v_and_b32 v3, 15, v1
              v_mul_u32_u24 v3, 1280, v3
              v_lshrrev_b32 v5, 4, v1
              v_lshl_add_u32 v4, v5, 3, v3      ; tile4: + 8*g4
              v_bfe_u32 v5, v1, 4, 1
              v_lshl_add_u32 v3, v5, 5, v3
              v_lshrrev_b32 v5, 5, v1
              v_lshl_add_u32 v3, v5, 4, v3""")
        OP = A2
        for mt in range(5):
            o = OWN + 4 * mt; r = GA[mt]
            for i in range(4): a(f"v_cvt_pk_bf16_f32 v{o+i}, 0, v{o+i}")
            for k in (0, 2): a(f"v_pk_mul_f32 v[{o+k}:{o+k+1}], v[{o+k}:{o+k+1}], v[{OM}:{OM+1}]")
            for i in range(4): a(f"v_cvt_pk_bf16_f32 v{o+i}, 0, v{o+i}")
            for k in (0, 2): a(f"v_pk_add_f32 v[{o+k}:{o+k+1}], v[{o+k}:{o+k+1}], v[{r+k}:{r+k+1}]")
            for i in range(2): a(f"v_cvt_pk_bf16_f32 v{OP+2*mt+i}, v{o+2*i}, v{o+2*i+1}")
            if mt % 2 == 1:
                p = OP + 2 * (mt - 1)
                a(f"v_permlane16_swap_b32 v{p}, v{p+2}\nv_permlane16_swap_b32 v{p+1}, v{p+3}")
                a(f"buffer_store_dwordx4 v[{p}:{p+3}], v3, {sOUT}, s13 offen offset:{32*(mt-1)}")
        a(f"buffer_store_dwordx2 v[{OP+8}:{OP+9}], v4, {sOUT}, s13 offen offset:128")
        self.end()

    def conv_addr(self, chs, va, vb):
        self.a(f"""s_mul_i32 s13, {chs}, {VSTR}
              s_mul_i32 s14, {chs}, {CSTR}
              s_add_u32 s14, s14, {CPB}
              v_bfe_u32 v6, v1, 2, 2
              v_mul_u32_u24 v7, {CPY}, v6
              v_add_u32 v7, s14, v7
              v_mov_b32 v{va}, s13
              v_cmp_eq_u32 vcc, 3, v6
              v_and_b32 v6, 3, v1
              v_cndmask_b32 v{va}, v7, v{va}, vcc
              v_lshl_add_u32 v{va}, v6, 3, v{va}
              v_lshrrev_b32 v7, 4, v1
              v_lshlrev_b32 v7, 4, v7
              v_sub_u32 v{va}, v{va}, v7
              v_add_u32 v{va}, 32, v{va}
              v_and_b32 v6, 15, v1
              v_lshl_add_u32 v{vb}, v6, 5, v7
              s_add_u32 s13, s13, {KXO}
              v_add_u32 v{vb}, s13, v{vb}""")
    def conv(self, tiles, acc, AS, BS, va, vb, aoff, boff, fill, first_issued=None, nxt=None, fper=1):
        a = self.a
        nf = max(tiles) + 1
        def reads(q, aoff, boff):
            L = []; g = q % 2
            for k in range(nf):
                L.append(f"ds_read_b128 v[{BS[g]+4*k}:{BS[g]+4*k+3}], v{vb} offset:{boff + 64*(8*k+q)}")
                for h in range(2):
                    r = AS[g] + 4 * k + 2 * h
                    L.append(f"ds_read_b64_tr_b16 v[{r}:{r+1}], v{va} offset:{512*k + 480 - 64*q - 8*h}".replace(f"v{va} ", f"v{aoff} "))
            return L
        if first_issued is None:
            for t in reads(0, aoff, boff): a(t)
            tq = a.lgt()
        else: tq = first_issued
        seen = set()
        for q in range(8):
            g = q % 2
            if q < 7: nx = reads(q + 1, aoff, boff)
            elif nxt is not None: nx = reads(0, nxt[0], nxt[1])
            else: nx = []
            a.wait(lg=tq)
            pairs = [(m, r) for r in range(nf) for m in range(nf) if (m + r) in tiles]
            per = -(-len(nx) // len(pairs))
            for (m, r) in pairs:
                d = acc[m + r]
                c = f"v[{d}:{d+3}]" if (m + r) in seen else "0"
                seen.add(m + r)
                a(f"v_mfma_f32_16x16x32_bf16 v[{d}:{d+3}], v[{AS[g]+4*m}:{AS[g]+4*m+3}], v[{BS[g]+4*r}:{BS[g]+4*r+3}], {c}")
                for _ in range(per):
                    if nx: a(nx.pop(0))
                if q >= 1:
                    for _ in range(fper):
                        if fill:
                            it = fill.pop(0)
                            it() if callable(it) else a(it)
            tq = a.lgt()
        return tq
    def ud_fill(self, uregs, ud, dsk):
        L = []
        for i in range(2):
            L += [f"v_lshlrev_b32 v{ud+2*i}, 16, v{uregs+i}", f"v_and_b32 v{ud+2*i+1}, s12, v{uregs+i}"]
        L += [f"v_mul_f32 v{ud+i}, v{dsk}, v{ud+i}" for i in range(4)]
        L += [f"v_cvt_pk_bf16_f32 v{ud+i}, 0, v{ud+i}" for i in range(4)]
        return L
    def epi_pair(self, y0, y1, ud0, ud1, o, vaddr, soff, off):
        L = []
        for k, (y, ud) in enumerate(((y0, ud0), (y1, ud1))):
            L += [f"v_cvt_pk_bf16_f32 v{y+i}, 0, v{y+i}" for i in range(4)]
            L += [f"v_add_f32 v{y+i}, v{y+i}, v{ud+i}" for i in range(4)]
            L += [f"v_cvt_pk_bf16_f32 v{o+2*k+i}, v{y+2*i}, v{y+2*i+1}" for i in range(2)]
        L += [f"v_permlane16_swap_b32 v{o}, v{o+2}", f"v_permlane16_swap_b32 v{o+1}, v{o+3}",
              f"buffer_store_dwordx4 v[{o}:{o+3}], v{vaddr}, {sWS}, {soff} offen offset:{off} sc1"]
        return L

    def role_c(self):
        a = self.a
        a(f"""LC:
              s_and_b32 s5, s2, 255          ; q = 32 j + k
              s_lshr_b32 s68, s5, 5          ; j
              s_and_b32 s69, s5, 31          ; k
              s_mul_i32 s6, s69, 3
              s_lshl_b32 s7, s69, 1
              s_add_u32 s7, s7, 16
              s_cmp_lt_u32 s69, 16
              s_cselect_b32 s6, s6, s7
              s_cselect_b32 s7, 3, 2         ; nch
              s_mul_i32 s8, s68, 80
              s_add_u32 s6, s6, s8
              s_cmp_eq_u32 s3, 3
              s_cbranch_scc1 LW3
              s_cmp_ge_u32 s3, s7
              s_cbranch_scc1 LAUX
              s_add_u32 s6, s6, s3           ; channel
              s_mul_i32 s8, s3, {VSTR}       ; V base""")
        P = 8
        VF = 5; PL = 40
        a(f"""s_mul_i32 s9, s6, 384
              v_mul_u32_u24 v2, 3, v1
              v_and_b32 v2, 0xfe, v2
              v_lshl_add_u32 v2, v2, 1, s9
              s_lshl_b32 s10, s6, 1
              s_and_b32 s10, s10, 0xfffc
              s_mov_b32 m0, s8
              v_and_b32 v6, 15, v1
              v_mul_u32_u24 v6, 800, v6
              v_lshrrev_b32 v7, 4, v1
              v_lshl_add_u32 v6, v7, 4, v6
              v_add_u32 v{VF}, s8, v6
              v_and_b32 v3, 1, v1
              v_lshlrev_b32 v3, 4, v3            ; 16 * parity
              v_sub_u32 v4, 16, v3
              s_mov_b32 s12, 0xffff0000""")
        self.kwait()
        for k in range(6):
            a(f"global_load_dwordx2 v[{PL+2*k}:{PL+2*k+1}], v2, s[{18+2*k}:{19+2*k}]")
            if k == 1: t_a = a.vmt()
        a(f"s_load_dword s70, s[30:31], s10\ns_load_dword s71, s[32:33], s10")
        self.wssrd()
        a(f"v_mov_b32 v6, 0x3f80")
        for g in range(3): a(f"ds_write_addtid_b32 v6 offset:{256*g}")
        def unp(k):
            d = P + 3 * k; l = PL + 2 * k
            a(f"""v_alignbit_b32 v{d+1}, v{l+1}, v{l}, v3
                  v_lshlrev_b32 v{d+2}, v4, v{l+1}
                  v_lshlrev_b32 v{d}, 16, v{d+1}
                  v_and_b32 v{d+1}, s12, v{d+1}
                  v_and_b32 v{d+2}, s12, v{d+2}""")
        a(f"""s_waitcnt lgkmcnt(0)
              s_add_u32 {TAG}, {TAG}, 1
              s_and_b32 s10, s6, 1
              s_lshl_b32 s10, s10, 4
              s_lshr_b32 s70, s70, s10
              s_lshl_b32 s70, s70, 16
              s_lshr_b32 s71, s71, s10
              s_lshl_b32 s71, s71, 16
              v_mov_b32 v{P+18}, s70
              v_mov_b32 v{P+19}, s71""")
        DT = P + 18; DSK = P + 19
        Lhi = struct.unpack("<f", struct.pack("<f", LOG2E))[0]; Llo = LOG2E - Lhi
        a(f"""s_mov_b32 s11, {f32(Lhi)}
              v_mul_f32 v6, s11, v{DT}
              v_fma_f32 v7, v{DT}, s11, -v6
              v_fmac_f32 v7, {f32(Llo)}, v{DT}
              v_exp_f32 v6, v6
              v_mul_f32 v7, {f32(0.6931471805599453)}, v7
              v_fmac_f32 v6, v6, v7
              v_cvt_pk_bf16_f32 v{DT}, 0, v6""")
        a.wait(vm=t_a)
        self.stamp("ck")
        unp(0); unp(1)
        A2, W = P, P + 3
        for g in range(3):
            a(f"v_mul_f32 v{A2+g}, v{DT}, v{A2+g}\nv_mul_f32 v{W+g}, v{DT}, v{W+g}")
        for g in range(3):
            a(f"v_mul_f32 v{A2+g}, s11, v{A2+g}\nv_mul_f32 v{W+g}, 0.15915494309189535, v{W+g}")
        nxt = [52]
        def alloc():
            r = nxt[0]; nxt[0] += 6; assert nxt[0] <= 128; return r
        TMP = alloc(); PK = 28
        mq = []; cnt = [0]
        def v(t):
            a(t); cnt[0] += 1
            if mq and cnt[0] % 5 == 0: mq.pop(0)()
        def cmul(z, p, q, conj=False):
            if not conj:
                for g in range(3): v(f"v_mul_f32 v{z+2*g}, v{p+2*g}, v{q+2*g}")
                for g in range(3): v(f"v_mul_f32 v{z+2*g+1}, v{p+2*g}, v{q+2*g+1}")
                for g in range(3): v(f"v_fma_f32 v{z+2*g}, -v{p+2*g+1}, v{q+2*g+1}, v{z+2*g}")
                for g in range(3): v(f"v_fmac_f32 v{z+2*g+1}, v{p+2*g+1}, v{q+2*g}")
            else:
                for g in range(3): v(f"v_mul_f32 v{z+2*g}, v{p+2*g}, v{q+2*g}")
                for g in range(3): v(f"v_mul_f32 v{z+2*g+1}, v{p+2*g+1}, v{q+2*g}")
                for g in range(3): v(f"v_fmac_f32 v{z+2*g}, v{p+2*g+1}, v{q+2*g+1}")
                for g in range(3): v(f"v_fma_f32 v{z+2*g+1}, -v{p+2*g}, v{q+2*g+1}, v{z+2*g+1}")
        def put(z, vec):
            for g in range(3): v(f"v_cvt_pk_bf16_f32 v{PK+g}, v{z+2*g}, v{z+2*g+1}")
            for g in range(3): v(f"ds_write_addtid_b32 v{PK+g} offset:{vec*800 + 256*g}")
        def direct(z, l):
            lit = "1.0" if l == 1 else f32(float(l))
            for g in range(3):
                if l == 1: v(f"v_fract_f32 v{TMP+2*g}, v{W+g}\nv_exp_f32 v{TMP+2*g+1}, v{A2+g}")
                else: v(f"v_mul_f32 v{TMP+2*g}, {lit}, v{W+g}\nv_mul_f32 v{TMP+2*g+1}, {lit}, v{A2+g}")
            if l != 1:
                for g in range(3): v(f"v_fract_f32 v{TMP+2*g}, v{TMP+2*g}\nv_exp_f32 v{TMP+2*g+1}, v{TMP+2*g+1}")
            for g in range(3): v(f"v_cos_f32 v{z+2*g}, v{TMP+2*g}\nv_sin_f32 v{z+2*g+1}, v{TMP+2*g}")
            for g in range(3): v(f"v_mul_f32 v{z+2*g}, v{z+2*g}, v{TMP+2*g+1}\nv_mul_f32 v{z+2*g+1}, v{z+2*g+1}, v{TMP+2*g+1}")
        def frags(base):
            for ks in range(12):
                a(f"ds_read_b128 v[{base+4*ks}:{base+4*ks+3}], v{VF} offset:{64*ks}")
            return a.lgt()
        CF = 176; RF = 128; DK = 224
        def mm(t, trf):
            d = DK + 4 * t
            def one(ks):
                def f():
                    if ks == 0: a.wait(lg=trf)
                    c = "0" if ks == 0 else f"v[{d}:{d+3}]"
                    a(f"v_mfma_f32_16x16x32_bf16 v[{d}:{d+3}], v[{RF+4*ks}:{RF+4*ks+3}], v[{CF+4*ks}:{CF+4*ks+3}], {c}")
                return f
            return [one(ks) for ks in range(12)]
        E1 = alloc(); E2 = alloc(); E4 = alloc(); E8 = alloc(); E12 = alloc(); E16 = alloc(); Z0 = alloc(); Z1 = alloc()
        direct(E1, 1); put(E1, 1)
        cur = E1; named = {2: E2, 4: E4, 8: E8, 12: E12, 16: E16}
        for k in range(2, 17):
            z = named.get(k) or (Z0 if cur != Z0 else Z1)
            cmul(z, cur, E1)
            if k < 16: put(z, k)
            cur = z
        self.stamp("k")
        frags(RF)
        a("s_waitcnt vmcnt(0)")
        for k in range(2, 6): unp(k)
        for g in range(3):
            a(f"v_mul_f32 v{P+6+g}, v{DT}, v{P+6+g}\nv_mul_f32 v{P+9+g}, v{DT}, v{P+9+g}")
        for g in range(3):
            bre, bim, cre, cim = P + 6 + g, P + 9 + g, P + 12 + g, P + 15 + g
            a(f"""v_mul_f32 v{Z0+2*g}, v{cre}, v{bre}
                  v_mul_f32 v{Z0+2*g+1}, v{cre}, v{bim}""")
        for g in range(3):
            bre, bim, cre, cim = P + 6 + g, P + 9 + g, P + 12 + g, P + 15 + g
            a(f"""v_fma_f32 v{Z0+2*g}, -v{cim}, v{bim}, v{Z0+2*g}
                  v_fma_f32 v{Z0+2*g+1}, -v{cim}, v{bre}, -v{Z0+2*g+1}""")
        put(Z0, 0)
        cur, oth = Z0, Z1
        for r in range(1, 16):
            cmul(oth, cur, E16, conj=True); put(oth, r); cur, oth = oth, cur
        self.stamp("k")
        tcf = frags(CF)
        E256 = alloc(); E512 = alloc(); E768 = alloc()
        direct(E256, 256)
        mq += mm(0, tcf)
        put(E256, 0)
        cur = E256
        for i in range(1, 8):
            z = Z0 if cur != Z0 else Z1
            cmul(z, cur, E2); put(z, i); cur = z
        cmul(E512, E256, E256); put(E512, 8)
        cmul(E768, E512, E256); put(E768, 12)
        for b, row in ((E512, 8), (E768, 12)):
            for i, e in enumerate((E4, E8, E12)):
                z = Z0 if i % 2 == 0 else Z1
                cmul(z, b, e); put(z, row + 1 + i)
        assert not mq
        self.stamp("k")
        t1 = frags(RF)
        Eb = E1
        cmul(Eb, E512, E512)
        cmul(E2, E768, E768)
        mq += mm(1, t1)
        cmul(E4, Eb, E256)
        cmul(E12, E2, E256)
        for b, row in ((Eb, 0), (E4, 4), (E2, 8), (E12, 12)):
            put(b, row)
            cmul(Z0, b, E8); put(Z0, row + 1)
        cmul(Z1, Z0, E8); put(Z1, 14)
        while mq: mq.pop(0)()
        t2 = frags(RF)
        X = 32
        d0, d1, d2 = DK, DK + 4, DK + 8
        a(f"""s_add_u32 s9, s8, {KXO}
              v_and_b32 v6, 15, v1
              v_lshrrev_b32 v7, 4, v1
              v_lshl_add_u32 v6, v6, 5, s9           ; Kx + 32 r
              v_lshl_add_u32 v2, v7, 3, v6           ; seg0 (+480)
              v_lshl_add_u32 v4, v7, 4, v6           ; seg1 (+992)
              v_lshl_add_u32 v5, v7, 9, v6
              v_min_u32 v6, 29, v1
              v_lshl_add_u32 v6, v6, 4, s9
              v_mov_b32 v28, 0
              v_mov_b32 v29, 0
              v_mov_b32 v30, 0
              v_mov_b32 v31, 0
              v_cvt_pk_bf16_f32 v{X}, v{d0}, v{d0+1}
              v_cvt_pk_bf16_f32 v{X+1}, v{d0+2}, v{d0+3}
              s_waitcnt lgkmcnt(0)""")
        self.stamp("ck")
        a("s_barrier")
        self.stamp("ck")
        m2 = mm(2, a.lgt())
        NX, NA, NB, N1, N2 = X + 24, X + 25, X + 26, X + 27, X + 28
        pre = [f"ds_write_b128 v6, v[28:31]", f"ds_write_b64 v2, v[{X}:{X+1}] offset:480",
               f"v_mov_b32_dpp v{NX}, v{d1} wave_shl:1 {DPP}", f"v_mov_b32 v{NA}, v{d1}", "s_mov_b64 s[10:11], 0xffff",
               f"v_mov_b32 v{NB}, v{NX}", "s_mov_b32 s14, 0x7fff0000", "s_mov_b32 s15, 0",
               f"v_permlane16_swap_b32 v{NA}, v{NB}", "s_nop 0",
               f"v_cndmask_b32 v{N1}, v{NX}, v{NB}, s[10:11]", f"v_cndmask_b32 v{N1}, v{N1}, v{NA}, s[14:15]"]
        for f in m2:
            f()
            if pre: a(pre.pop(0))
        A_ = [d1, d1 + 1, d1 + 2, d1 + 3, N1]; B_ = [d2, d2 + 1, N2]
        def cv(r, pairs, src):
            for i, (lo, hi) in enumerate(pairs):
                a(f"v_cvt_pk_bf16_f32 v{r+i}, v{src[lo]}, v{src[hi]}")
        cv(X + 12, [(0,0),(1,2),(2,2),(3,4)], A_)
        cv(X + 16, [(0,0),(0,1),(1,1),(2,2),(2,2),(2,3),(3,3)], A_)
        a(f"""s_mov_b32 exec_hi, 0
              ds_write_b128 v4, v[{X+12}:{X+15}] offset:992
              s_mov_b64 exec, -1
              v_readlane_b32 s10, v{d2}, 0
              v_mov_b32 v{N2}, v{d2+2}
              v_writelane_b32 v{N1}, s10, 63
              v_mov_b32_dpp v{N2}, v{d2} wave_shl:1 {DPP}
              v_cvt_pk_bf16_f32 v{X+23}, v{N1}, v{N1}""")
        cv(X + 4, [(0,0),(0,0),(0,1),(1,1),(1,1),(1,1),(2,2),(2,2)], B_)
        a(f"""ds_write_b128 v5, v[{X+4}:{X+7}] offset:2528
              ds_write_b128 v5, v[{X+8}:{X+11}] offset:2544
              s_mov_b32 exec_lo, 0
              ds_write_b128 v5, v[{X+16}:{X+19}] offset:480
              ds_write_b128 v5, v[{X+20}:{X+23}] offset:496
              s_mov_b64 exec, -1""")
        self.conv_addr("s3", 3, 4)
        if self.dumpk:
            a(f"""s_waitcnt lgkmcnt(0)
                  v_lshl_add_u32 v6, v1, 4, s9
                  s_mul_i32 s10, s6, 4608
                  s_add_u32 s10, s10, {WS_K}
                  v_lshlrev_b32 v7, 4, v1""")
            for p in range(5):
                a(f"ds_read_b128 v[96:99], v6 offset:{1024*p}\ns_waitcnt lgkmcnt(0)")
                if p == 4: a("s_mov_b32 exec_hi, 0")
                a(f"buffer_store_dwordx4 v[96:99], v7, {sWS}, s10 offen\ns_add_u32 s10, s10, 1024\ns_waitcnt vmcnt(0)")
            a("s_mov_b64 exec, -1")
        a(f"""s_mul_i32 s14, s3, {CSTR}
              s_add_u32 s14, s14, {CPB + 32}
              v_and_b32 v6, 15, v1
              v_lshrrev_b32 v7, 4, v1
              v_lshl_add_u32 v5, v6, 5, s14
              v_lshl_add_u32 v5, v7, 3, v5
              v_lshlrev_b32 v6, 5, v6
              v_lshrrev_b32 v7, 5, v1
              v_lshl_add_u32 v6, v7, 4, v6
              v_bfe_u32 v7, v1, 4, 1
              v_lshl_add_u32 v2, v7, 9, v6          ; delta 1
              v_mul_u32_u24 v7, 1536, v7
              v_add_u32 v0, v7, v6                  ; delta 3
              s_mov_b32 s12, 0xffff0000
              s_lshl_b32 s9, s6, 12
              s_add_u32 s9, s9, {WS_AT}
              s_waitcnt lgkmcnt(0)
              s_barrier""")
        if self.P("cp", 2): a(f"s_setprio {self.P('cp', 2)}")
        self.stamp()
        tiles = [0, 1, 2, 5, 6, 7]
        acc = {n: 32 + 4 * i for i, n in enumerate(tiles)}
        UU = 8; UDR = 192 + 32
        ud = {n: 196 + 4 * i for i, n in enumerate(tiles)}
        for i, n in enumerate(tiles): a(f"ds_read_b64 v[{UU+2*i}:{UU+2*i+1}], v5 offset:{512*n}")
        fill = []
        for i, n in enumerate(tiles): fill += self.ud_fill(UU + 2 * i, ud[n], DSK)
        self.conv(tiles, acc, (64, 96), (128, 160), 3, 4, 3, 0, fill)
        assert not fill
        self.stamp()
        for k, (x, y, va) in enumerate(((0, 1, 2), (2, 5, 0), (6, 7, 2))):
            for t in self.epi_pair(acc[x], acc[y], ud[x], ud[y], 64 + 4 * k, va, "s9", 512 * x): a(t)
        a(f"""s_lshl_b32 s9, s6, 2
              s_add_u32 s9, s9, {WS_FA}
              s_waitcnt vmcnt(0)""")
        self.flag("s9", 8, 0xfff00fff, FAS)
        self.end()

    def wave3(self):
        a = self.a
        ST = CPB
        a("LW3:")
        if self.P("wp", 3): a(f"s_setprio {self.P('wp', 3)}")
        a(f"""s_and_b32 s8, s69, 7
              s_lshl_b32 s8, s8, 2
              s_lshr_b32 s9, s69, 3
              s_add_u32 s8, s8, s9           ; tb
              s_mul_i32 s11, s8, {64*1280}
              s_mul_i32 s12, s68, 160
              s_add_u32 s11, s11, s12        ; x offset
              s_add_u32 s12, s11, 5120
              s_mov_b32 s13, 1120
              s_mov_b32 s14, 5120""")
        for p in range(5):
            a(f"""v_add_u32 v2, {64*p}, v1
                  v_mul_u32_u24 v3, 6554, v2
                  v_lshlrev_b32 v2, 4, v2
                  v_lshrrev_b32 v3, 16, v3
                  v_mad_u32_u24 v2, v3, s13, v2
                  v_lshrrev_b32 v3, 2, v3
                  v_mad_u32_u24 v{16+p}, v3, s14, v2""")
        a(f"""s_lshl_b32 s10, s6, 1
              s_and_b32 s9, s10, 0xfffc
              s_min_u32 s9, s9, 1272
              s_sub_u32 s10, s10, s9
              s_lshl_b32 s10, s10, 3""")
        self.kwait()
        self.srd(48, 16, 2621440)
        for p in range(10):
            a(f"s_mov_b32 m0, {ST + 1024*p}\nbuffer_load_dwordx4 v{16 + p % 5}, {sX}, {'s11' if p < 5 else 's12'} offen lds")
        a("s_load_dwordx2 s[70:71], s[32:33], s9")
        self.wssrd()
        a(f"""v_lshrrev_b32 v3, 4, v1
              v_lshlrev_b32 v3, 1, v3
              v_bfe_u32 v4, v1, 1, 1
              v_add_u32 v3, v3, v4            ; tchunk
              v_lshlrev_b32 v3, 2, v3
              v_bfe_u32 v4, v1, 2, 2
              v_add_u32 v3, v3, v4            ; rho
              v_mul_u32_u24 v3, 160, v3
              v_and_b32 v4, 1, v1
              v_lshl_add_u32 v3, v4, 3, v3
              v_add_u32 v3, {ST}, v3
              v_and_b32 v4, 7, v1
              v_lshlrev_b32 v4, 12, v4
              v_lshrrev_b32 v5, 3, v1
              v_lshl_add_u32 v4, v5, 4, v4
              v_lshlrev_b32 v2, 4, v1
              s_mul_i32 s11, s68, {80*4096}
              s_lshl_b32 s12, s8, 7
              s_add_u32 s11, s11, s12
              s_add_u32 s11, s11, {WS_UT}
              s_waitcnt lgkmcnt(0)
              s_add_u32 {TAG}, {TAG}, 1
              s_lshr_b64 s[70:71], s[70:71], s10
              s_lshl_b32 s12, s70, 16
              v_mov_b32 v8, s12
              s_and_b32 s12, s70, 0xffff0000
              v_mov_b32 v9, s12
              s_lshl_b32 s12, s71, 16
              v_mov_b32 v10, s12
              s_waitcnt vmcnt(0)""")
        self.stamp()
        tr = []
        def trd(s):
            for h in range(2):
                a(f"ds_read_b64_tr_b16 v[{24+4*s+2*h}:{25+4*s+2*h}], v3 offset:{5120*h + 16*s}")
            tr.append(a.lgt())
        for s in range(6): trd(s)
        for s in range(10):
            a.wait(lg=tr[s])
            a(f"buffer_store_dwordx4 v[{24+4*s}:{27+4*s}], v4, {sWS}, s11 offen sc1")
            if s < 9: a("s_add_u32 s11, s11, 32768")
            if s + 6 < 10: trd(s + 6)
        a(f"""s_lshl_b32 s9, s5, 7
              s_add_u32 s9, s9, {WS_FU}
              s_lshl_b32 s12, s68, 10
              s_add_u32 s12, s12, s69
              s_lshl_b32 s12, s12, 2
              s_add_u32 s12, s12, {WS_FU}
              s_waitcnt vmcnt(0)""")
        self.flag("s12", 4, 0xffffffff)
        self.stamp()
        self.spoll([("s9", 0, 16), ("s9", 64, 16)], sleep=self.P("usleep", 1))
        self.stamp()
        UW = 16
        a(f"s_lshl_b32 s9, s6, 12\ns_add_u32 s9, s9, {WS_UT}")
        tu = []
        for c in range(3):
            if c == 2:
                a(f"s_cmp_eq_u32 s7, 2\ns_cselect_b32 s9, 0x7ff00000, s9")
            for p in range(4):
                a(f"buffer_load_dwordx4 v[{UW+16*c+4*p}:{UW+16*c+4*p+3}], v2, {sWS}, s9 offen offset:{1024*p} sc1")
            tu.append(a.vmt())
            if c < 2: a("s_add_u32 s9, s9, 4096")
        a(f"""v_and_b32 v6, 1, v1
              v_lshlrev_b32 v6, 4, v6
              v_lshrrev_b32 v7, 1, v1
              s_mul_i32 s9, s7, 3
              s_sub_u32 s9, s9, 1
              v_min_u32 v7, s9, v7
              v_mul_u32_u24 v7, {CPY}, v7
              v_add_u32 v6, v6, v7
              v_mov_b32 v12, 0
              v_mov_b32 v13, 0
              v_mov_b32 v14, 0
              v_mov_b32 v15, 0
              v_add_u32 v5, {CPB}, v2
              ds_write_b128 v6, v[12:15] offset:{CPB}""")
        C3 = 64
        for c in range(3):
            a.wait(vm=tu[c])
            if c == 2: a("s_cmp_eq_u32 s7, 2\ns_cbranch_scc1 LW3c")
            for p in range(4):
                w = UW + 16 * c + 4 * p; T = 112 + 16 * (p % 2); c3 = C3 + 16 * c + 4 * p
                base = c * CSTR + 32 + 1024 * p
                if p == 0:
                    a(f"v_mov_b32 v{T}, 0\nv_mov_b32 v{T+12}, 0")
                else:
                    a(f"v_mov_b32_dpp v{T}, v{w-1} wave_ror:1 {DPP}\nv_mov_b32_dpp v{T+12}, v{w-2} wave_ror:1 {DPP}")
                a(f"ds_write_b128 v5, v[{w}:{w+3}] offset:{base}")
                a(f"v_mov_b32_dpp v{T}, v{w+3} wave_shr:1 {DPP}\nv_mov_b32_dpp v{T+12}, v{w+2} wave_shr:1 {DPP}")
                for i in range(3): a(f"v_mov_b32 v{T+1+i}, v{w+i}")
                for i in range(4): a(f"v_alignbit_b32 v{T+4+i}, v{w+i}, v{T+i}, 16")
                a(f"v_alignbit_b32 v{c3}, v{T}, v{T+12}, 16")
                for i in range(1, 4): a(f"v_alignbit_b32 v{c3+i}, v{T+i}, v{T+i-1}, 16")
                a(f"""ds_write_b128 v5, v[{T+4}:{T+7}] offset:{base + CPY}
                      ds_write_b128 v5, v[{T}:{T+3}] offset:{base + 2*CPY}""")
        a("LW3c:\ns_mov_b32 s8, 0")
        self.conv_addr("s8", 3, 4)
        a(f"""v_mov_b32 v6, {CSTR}
              v_mov_b32 v7, {VSTR}
              v_cndmask_b32 v6, v6, v7, vcc
              v_add_u32 v11, v3, v6
              v_add_u32 v16, v11, v6
              v_and_b32 v6, 15, v1
              v_lshrrev_b32 v7, 4, v1
              v_lshlrev_b32 v5, 5, v6
              v_lshl_add_u32 v5, v7, 3, v5
              v_lshlrev_b32 v6, 5, v6
              v_lshrrev_b32 v7, 5, v1
              v_lshl_add_u32 v6, v7, 4, v6
              v_bfe_u32 v7, v1, 4, 1
              v_lshl_add_u32 v0, v7, 9, v6          ; delta 1
              v_and_b32 v6, 1, v1
              v_lshlrev_b32 v6, 4, v6
              v_bfe_u32 v7, v1, 1, 2
              v_min_u32 v7, 2, v7
              v_mul_u32_u24 v7, {VSTR}, v7
              v_add_u32 v6, v6, v7
              s_mov_b32 s12, 0xffff0000
              s_lshl_b32 s9, s6, 12
              s_add_u32 s9, s9, {WS_AT}
              s_waitcnt lgkmcnt(0)""")
        self.stamp()
        a("s_barrier")
        a("ds_write_b128 v6, v[12:15]")
        for c in range(3):
            for p in range(4):
                c3 = C3 + 16 * c + 4 * p
                a(f"ds_write_b128 v2, v[{c3}:{c3+3}] offset:{c * VSTR + 32 + 1024 * p}")
        UU = 20; ud = {}
        for c in range(3):
            for k, n in enumerate((3, 4)):
                r = UU + 4 * c + 2 * k
                a(f"ds_read_b64 v[{r}:{r+1}], v5 offset:{CPB + c * CSTR + 32 + 512*n}")
                ud[(c, n)] = 32 + 8 * c + 4 * k
        a("s_waitcnt lgkmcnt(0)\ns_barrier")
        if self.P("cp", 2): a(f"s_setprio {self.P('cp', 2)}")
        self.stamp()
        AS = (64, 84); BS = (104, 124)
        va = (3, 11, 16)
        accs = [{3: 144 + 8 * c, 4: 148 + 8 * c} for c in range(3)]
        udf = lambda c: self.ud_fill(UU + 4 * c, ud[(c, 3)], 8 + c) + self.ud_fill(UU + 4 * c + 2, ud[(c, 4)], 8 + c)
        def epi(c):
            L = self.epi_pair(accs[c][3], accs[c][4], ud[(c, 3)], ud[(c, 4)], 168 + 4 * c, 0, "s9", 512 * 3)
            return L + ["s_add_u32 s9, s9, 4096"]
        f = udf(0) + udf(1)
        t = self.conv([3, 4], accs[0], AS, BS, 3, 4, va[0], 0, f, nxt=(va[1], VSTR)); assert not f
        f = epi(0) + udf(2)
        t = self.conv([3, 4], accs[1], AS, BS, 3, 4, va[1], VSTR, f, first_issued=t, nxt=(va[2], 2 * VSTR)); assert not f
        a("s_cmp_eq_u32 s7, 2\ns_cbranch_scc1 LW3e")
        f = epi(1)
        self.conv([3, 4], accs[2], AS, BS, 3, 4, va[2], 2 * VSTR, f, first_issued=t); assert not f
        for x in epi(2): a(x)
        a("s_branch LW3f\nLW3e:\ns_waitcnt lgkmcnt(0)\ns_nop 7")
        for x in epi(1): a(x)
        a(f"""LW3f:
              s_lshl_b32 s9, s6, 2
              s_add_u32 s9, s9, {WS_FA + 12 * FAS}
              v_mov_b32 v8, {TAG}
              v_and_b32 v9, 7, v1
              v_mul_u32_u24 v9, {FAS}, v9
              v_lshrrev_b32 v10, 3, v1
              v_lshl_add_u32 v9, v10, 2, v9
              s_lshl_b32 s7, s7, 3
              s_bfm_b64 s[10:11], s7, 0
              s_waitcnt vmcnt(0)
              s_mov_b64 exec, s[10:11]
              buffer_store_dword v8, v9, {sWS}, s9 offen sc1
              s_mov_b64 exec, -1""")
        self.end()
        self.aux()
        a("Lexit:\ns_endpgm")

    def aux(self):
        a = self.a
        STG = (2 * VSTR, CPB + 2 * CSTR)
        a(f"""LAUX:
              s_cmp_eq_u32 s5, 255
              s_cbranch_scc1 LUPD
              s_lshl_b32 s8, s68, 4
              s_add_u32 s8, s8, s69
              s_sub_u32 s8, s8, 16           ; w2i
              s_cmp_ge_u32 s8, 120
              s_cbranch_scc1 Lexit""")
        if self.P("wp", 3): a(f"s_setprio {self.P('wp', 3)}")
        a(f"""s_mul_i32 s9, s8, 5462
              s_lshr_b32 s9, s9, 16          ; db = w2i / 12
              s_mul_i32 s10, s9, 12
              s_sub_u32 s10, s8, s10         ; fbp
              v_lshrrev_b32 v2, 3, v1
              v_mul_u32_u24 v2, 1280, v2
              v_and_b32 v3, 7, v1
              v_lshl_add_u32 v2, v3, 4, v2
              s_mul_i32 s11, s10, {128*1280}
              s_lshl_b32 s12, s9, 7
              s_add_u32 s11, s11, s12
              v_bfe_u32 v3, v1, 4, 1
              v_lshlrev_b32 v3, 4, v3
              v_lshrrev_b32 v4, 5, v1
              v_lshl_add_u32 v3, v4, 2, v3
              v_bfe_u32 v4, v1, 2, 2
              v_add_u32 v3, v3, v4
              v_lshlrev_b32 v3, 7, v3
              v_and_b32 v4, 3, v1
              v_lshl_add_u32 v3, v4, 3, v3
              v_add_u32 v4, {STG[1]}, v3
              v_add_u32 v3, {STG[0]}, v3""")
        self.kwait()
        self.srd(52, 38, 1966080)
        tl = []
        for p in range(16):
            a(f"s_mov_b32 m0, {STG[p // 8] + 1024 * (p % 8)}\nbuffer_load_dwordx4 v2, {sW2}, s11 offen lds")
            if p < 15: a(f"s_add_u32 s11, s11, {8*1280}")
            tl.append(a.vmt())
        self.wssrd()
        a("v_lshlrev_b32 v2, 4, v1")
        for dt in range(4):
            a(f"""s_lshl_b32 s12, s9, 2
                  s_add_u32 s12, s12, {dt}
                  s_mul_i32 s13, s12, 205
                  s_lshr_b32 s13, s13, 10
                  s_mul_i32 s14, s13, 235
                  s_add_u32 s12, s12, s14
                  s_mul_i32 s14, s10, 20
                  s_add_u32 s12, s12, s14
                  s_lshl_b32 s12, s12, 10
                  s_add_u32 s{72+dt}, s12, {WS_W2F}""")
        a(f"""s_mul_i32 s12, s10, 22
              s_lshr_b32 s12, s12, 6          ; fbp / 3
              s_mul_i32 s12, s12, 5
              s_add_u32 s12, s12, s10         ; word = 8 (fbp/3) + fbp%3
              s_cmp_ge_u32 s9, 5
              s_cselect_b32 s13, 1, 0
              s_sub_u32 s14, s9, s13
              s_mul_i32 s13, s13, 5
              s_sub_u32 s76, s9, s13          ; db % 5
              s_lshl_b32 s14, s14, 10
              s_add_u32 s12, s12, s14
              s_lshl_b32 s12, s12, 2
              s_add_u32 s12, s12, {WS_FW - 4096 + 12}
              v_and_b32 v5, 31, v1
              v_lshlrev_b32 v5, 7, v5
              v_cmp_gt_u32 vcc, 32, v1
              v_mov_b32 v6, {4096 - 12}
              v_cndmask_b32 v6, 0, v6, vcc
              v_add_u32 v5, v5, v6
              s_waitcnt lgkmcnt(0)
              s_add_u32 {TAG}, {TAG}, 1""")
        for kk in range(4):
            a.wait(vm=tl[4 * kk + 3])
            if kk == 0: self.stamp()
            for dt in range(4):
                r = 16 + 4 * (kk * 4 + dt)
                for h in range(2):
                    a(f"ds_read_b64_tr_b16 v[{r+2*h}:{r+2*h+1}], v{3 + kk // 2} offset:{(32*(kk % 2) + 8*h)*128 + 32*dt}")
        t1 = a.lgt()
        for kk in range(4):
            for dt in range(4):
                r = 16 + 4 * (kk * 4 + dt)
                a.wait(lg=t1 - 2 * (15 - (kk * 4 + dt)))
                a(f"buffer_store_dwordx4 v[{r}:{r+3}], v2, {sWS}, s{72+dt} offen sc1\ns_add_u32 s{72+dt}, s{72+dt}, 5120")
        a("""s_cmp_lt_u32 s76, 4
             s_cselect_b32 s10, -1, 0
             s_cmp_ge_u32 s76, 1
             s_cselect_b32 s11, -1, 0
             s_waitcnt vmcnt(0)
             s_mov_b64 exec, s[10:11]""")
        self.flag("s12", 4, None, pre=True)
        self.end()
        a("LUPD:")
        self.kwait(); self.wssrd()
        a(f"""s_waitcnt lgkmcnt(0)
              s_add_u32 {TAG}, {TAG}, 1
              s_barrier
              s_barrier""")
        self.stamp()
        a("v_lshrrev_b32 v2, 3, v1\nv_lshlrev_b32 v2, 10, v2\nv_and_b32 v3, 7, v1\nv_lshl_add_u32 v2, v3, 4, v2")
        for i in range(4 if "noG" not in self.opts else 0):
            a(f"s_mov_b32 s12, {WS_FH + 8192*i}"); self.poll(2, 4, soff="s12", w=4, sleep=4)
        a("v_lshlrev_b32 v2, 4, v1")
        for part in range(2):
            for i in range(3):
                if i == 2: a("v_min_u32 v3, 31, v1\nv_lshlrev_b32 v3, 4, v3")
                a(f"s_mov_b32 s12, {WS_FA + 12*FAS*part + 1024*i}"); self.poll(2 if i < 2 else 3, 4, soff="s12", w=4, sleep=4)
        a(f"s_mov_b32 s12, {WS_E}")
        self.flag("s12", 4)
        self.end()

    def build(self):
        self.prologue(); self.role_g(); self.role_c(); self.wave3()
        body = self.a.finish()
        hdr = open("cdna_kernels/" + NAME + ".s.ref").read().split("; Override launch")[0]
        return hdr + f"""; @launch grid=(512,1,1) block=(256,1,1) lds=81920
.amdgcn_target "amdgcn-amd-amdhsa--gfx950"
.text
.globl {KN}
.p2align 8
.type {KN},@function
{KN}:
{body}.section .rodata,"a"
.p2align 6
.amdhsa_kernel {KN}
  .amdhsa_next_free_vgpr 256
  .amdhsa_next_free_sgpr 102
  .amdhsa_accum_offset 256
  .amdhsa_group_segment_fixed_size 0
  .amdhsa_kernarg_size 128
  .amdhsa_user_sgpr_count 2
  .amdhsa_user_sgpr_kernarg_segment_ptr 1
  .amdhsa_system_sgpr_workgroup_id_x 1
  .amdhsa_float_denorm_mode_32 3
.end_amdhsa_kernel
"""

if __name__ == "__main__":
    out = sys.argv[1] if len(sys.argv) > 1 else "cdna_kernels/" + NAME + ".s"
    prof = "prof" in sys.argv; dumpk = "dumpk" in sys.argv
    open(out, "w").write(Gen(prof, dumpk, sys.argv[2:]).build())
    print("wrote", out)
```

```python
import sys, struct
sys.path.insert(0, "work")
from asmgen import Asm

NAME = "gated_mix__ssm_conv_s4__dense_activation_relu__prompt"
KN = NAME + "_kernel"
WS_E = 0; WS_FW = 0x8000; WS_FU = 0x10000; WS_FH = 0x18000; WS_G = 0x20000; WS_FA = 0x40000; FAS = 2688
VER = 4
WS_W2F = 0x100000; WS_UT = 0x300000; WS_AT = 0x600000; WS_HF = 0x900000; WS_SIZE = 0x1000000
WS_K = 0x1000000
WS_ST = 0x2000000
SPIN = 20000
def f32(x): return "0x%08x" % struct.unpack("<I", struct.pack("<f", x))[0]
LOG2E = 1.4426950408889634

sX, sW1, sWS, sOUT = "s[48:51]", "s[52:55]", "s[56:59]", "s[60:63]"
sW2 = "s[52:55]"; sGW = "s[64:67]"
TAG = "s4"
WSP = "s[96:97]"
DPP = "row_mask:0xf bank_mask:0xf"
VSTR = 12768; CPB = 3 * VSTR; CSTR = 12480; CPY = 4160; KXO = 4160

class Gen:
    def __init__(self, prof=False, dumpk=False, opts=()):
        self.fi = 0; self.a = Asm(); self.prof = prof; self.dumpk = dumpk; self.opts = set(opts)
        self.par = dict(o.split("=") for o in opts if "=" in o)
    def P(self, k, d): return int(self.par.get(k, d))
    def stamp(self, grp="c"):
        if not self.prof: return
        if grp != "*" and self.par.get("sg", "c") not in grp: return
        i = self.fi; self.fi += 1
        assert i < 16
        op = "s_memtime" if "cyc" in self.opts else "s_memrealtime"
        self.a(f"{op} s[98:99]\ns_waitcnt lgkmcnt(0)\ns_mov_b32 s{80+i}, s98")
    def end(self):
        a = self.a
        if self.prof:
            self.stamp("*")
            n = self.fi - 1
            self.fi = 0
            a(f"""s_lshl_b32 s5, s2, 2
                  s_add_u32 s5, s5, s3
                  s_lshl_b32 s5, s5, 7
                  s_add_u32 s5, s5, {WS_ST}
                  v_mov_b32 v2, s5""")
            for i in range(n + 1):
                a(f"v_mov_b32 v3, s{80+i}\nglobal_store_dword v2, v3, {WSP} offset:{4*i}")
            a(f"""v_mov_b32 v3, s100
                  global_store_dword v2, v3, {WSP} offset:72
                  v_mov_b32 v3, s101
                  global_store_dword v2, v3, {WSP} offset:68
                  v_mov_b32 v3, {n + 1}
                  global_store_dword v2, v3, {WSP} offset:64""")
        a("s_endpgm")
    def srd(self, d, p, n):
        self.a(f"s_mov_b32 s{d}, s{p}\ns_mov_b32 s{d+1}, s{p+1}\ns_mov_b32 s{d+2}, {n}\ns_mov_b32 s{d+3}, 0x20000")
    def kwait(self):
        a = self.a
        a("s_waitcnt lgkmcnt(0)")
        if self.prof: a("s_memrealtime s[98:99]\ns_waitcnt lgkmcnt(0)\ns_mov_b32 s101, s98")
    def wssrd(self):
        self.srd(56, 46, (WS_ST + 0x100000) if (self.prof or self.dumpk or "dup" in self.par) else WS_SIZE)
        self.a(f"s_mov_b32 s96, s46\ns_mov_b32 s97, s47\ns_load_dword {TAG}, s[46:47], {WS_E}")
    def chk(self, vt, w):
        a = self.a
        if w == 1:
            a(f"v_cmp_ne_u32 vcc, {TAG}, v{vt}"); return
        for i in range(w): a(f"v_xor_b32 v{vt+i}, {TAG}, v{vt+i}")
        if w == 2: a(f"v_or_b32 v{vt}, v{vt}, v{vt+1}")
        else: a(f"v_or_b32 v{vt}, v{vt}, v{vt+1}\nv_or3_b32 v{vt}, v{vt}, v{vt+2}, v{vt+3}")
        a(f"v_cmp_ne_u32 vcc, 0, v{vt}")
    def pload(self, vaddr, vt, soff, w, cond=True):
        sfx = {1: "dword", 2: "dwordx2", 4: "dwordx4"}[w]
        r = f"v{vt}" if w == 1 else f"v[{vt}:{vt+w-1}]"
        self.a(f"buffer_load_{sfx} {r}, v{vaddr}, {sWS}, {soff} offen sc1" + (" ; cond" if cond else ""))
    def poll(self, vaddr, vt, soff="0", w=1, first_loaded=False, sleep=0):
        a = self.a
        L = a.label("poll"); Dn = a.label("pdone")
        if first_loaded:
            self.chk(vt, w); a(f"s_cbranch_vccz {Dn}")
        a(f"s_mov_b32 s15, {SPIN}\n{L}:")
        if sleep: a(f"s_sleep {sleep}")
        self.pload(vaddr, vt, soff, w)
        a("s_waitcnt vmcnt(0) ; cond")
        self.chk(vt, w)
        a(f"""s_cbranch_vccz {Dn}
              s_sub_u32 s15, s15, 1
              s_cbranch_scc0 {L}
              {Dn}:""")
    def sloads(self, srcs, base):
        r = base
        for (so, imm, n) in srcs:
            self.a(f"s_load_dwordx{n} s[{r}:{r+n-1}], {WSP}, {so} " + (f"offset:{imm} " if imm else "") + "glc")
            r += n
    def spoll(self, srcs, base=16, sleep=0, use=None, first_loaded=False, prio=None):
        a = self.a
        Lp = a.label("sp"); Ld = a.label("sd"); Lc = a.label("sc")
        tot = sum(n for (_, _, n) in srcs)
        a(f"s_mov_b32 s15, {SPIN}")
        if first_loaded: a(f"s_branch {Lc} ; keep")
        a(f"{Lp}:")
        self.sloads(srcs, base)
        a("s_waitcnt lgkmcnt(0)")
        if first_loaded: a(f"{Lc}:")
        if use is None:
            for i in range(base, base + tot): a(f"s_xor_b32 s{i}, s{i}, {TAG}")
            for i in range(base + 2, base + tot, 2): a(f"s_or_b64 s[{base}:{base+1}], s[{base}:{base+1}], s[{i}:{i+1}]")
        else:
            for i in use: a(f"s_xor_b32 s{base+i}, s{base+i}, {TAG}")
            for i in use[1:]: a(f"s_or_b32 s{base+use[0]}, s{base+use[0]}, s{base+i}")
        a(f"s_cbranch_scc0 {Ld}")
        if prio is not None: a("s_setprio 0")
        if sleep: a(f"s_sleep {sleep}")
        a(f"""s_sub_u32 s15, s15, 1
              s_cbranch_scc0 {Lp}
              {Ld}:""")
        if prio is not None: a(f"s_setprio {prio}")
    def flag(self, soff_reg, vt, mask=1, stride=128, pre=False):
        a = self.a
        a(f"v_mov_b32 v{vt}, {TAG}")
        if not pre: a(f"v_mul_u32_u24 v{vt+1}, {stride}, v1")
        if mask is not None: a(f"s_mov_b32 exec_lo, {hex(mask)}\ns_mov_b32 exec_hi, 0")
        a(f"""buffer_store_dword v{vt}, v{vt+1}, {sWS}, {soff_reg} offen sc1 ; cond
              s_mov_b64 exec, -1""")

    def prologue(self):
        a = self.a
        if self.prof: a("s_memrealtime s[100:101]")
        a(f"""s_cmp_ge_u32 s2, 512
              s_cbranch_scc1 Lexit
              s_load_dwordx16 s[16:31], s[0:1], 0
              s_load_dwordx16 s[32:47], s[0:1], 64
              v_lshrrev_b32 v2, 6, v0
              v_and_b32 v1, 63, v0
              v_readfirstlane_b32 s3, v2""")
        if "cpf" in self.opts:
            a(f"""s_lshr_b32 s5, s2, 3
                  s_cmp_ge_u32 s5, {self.P('cpf_n', 7)}
                  s_cbranch_scc1 Lnopf
                  s_cmp_lg_u32 s3, 0
                  s_cbranch_scc1 Lnopf
                  s_getpc_b64 s[6:7]
                  s_lshl_b32 s5, s5, 13
                  v_lshlrev_b32 v2, 7, v1
                  v_add_u32 v2, s5, v2
                  global_load_dword v255, v2, s[6:7] ; cond
                  Lnopf:""")
        a(("s_cmp_ge_u32" if "gfirst" in self.opts else "s_cmp_lt_u32") + " s2, 256\ns_cbranch_scc1 " + ("Lexit" if ("noC" in self.opts and not self.opts & {"cK", "cM", "cW", "cA"}) else "LC"))
        if "noG" in self.opts: a("s_branch Lexit")

    def role_g(self):
        a = self.a
        noC = "noC" in self.opts
        if self.P("gp1", 3): a(f"s_setprio {self.P('gp1', 3)}")
        a(f"""s_and_b32 s5, s2, 7
              s_bfe_u32 s6, s2, 0x50003
              s_and_b32 s7, s6, 3           ; i
              s_lshr_b32 s8, s6, 2          ; cb2 = j
              s_lshr_b32 s9, s5, 1
              s_lshl_b32 s9, s9, 2
              s_add_u32 s9, s9, s7          ; rb
              s_and_b32 s13, s5, 1
              s_lshl_b32 s10, s13, 3
              s_add_u32 s10, s10, s8        ; cb
              s_lshl_b32 s11, s5, 2
              s_add_u32 s11, s11, s7        ; rb2
              """)
        stag = self.par.get("stag", "h5")
        if stag == "full":
            a("""s_mul_i32 s12, s7, 5
              s_add_u32 s12, s12, 1
              s_lshr_b32 s12, s12, 1
              s_mul_i32 s13, s13, 5
              s_add_u32 s12, s12, s13
              s_add_u32 s12, s12, s8
              s_sub_u32 s13, s12, 10
              s_cmp_ge_u32 s12, 10
              s_cselect_b32 s12, s13, s12
              s_sub_u32 s13, s12, 10
              s_cmp_ge_u32 s12, 10
              s_cselect_b32 s12, s13, s12""")
        elif stag == "h5": a("s_add_u32 s12, s7, s8\ns_and_b32 s12, s12, 1\ns_mul_i32 s12, s12, 5")
        elif stag == "h3": a("s_add_u32 s12, s7, s8\ns_and_b32 s12, s12, 3")
        elif stag == "h4": a("s_add_u32 s12, s7, s8\ns_and_b32 s12, s12, 3\ns_mul_i32 s12, s12, 5\ns_lshr_b32 s12, s12, 1")
        else: a("s_mov_b32 s12, 0")
        a(f"""
              s_lshl_b32 s13, s9, 2
              s_add_u32 s13, s13, s3
              s_mul_i32 s74, s13, {32*1280}
              s_add_u32 s75, s74, 1280       ; x wrap
              s_lshl_b32 s13, s12, 7
              s_add_u32 s72, s74, s13        ; x ptr
              s_mul_i32 s76, s10, 192        ; w1 base
              s_add_u32 s77, s76, 1966080
              s_mul_i32 s13, s12, 196608
              s_add_u32 s73, s76, s13        ; w1 ptr
              s_lshl_b32 s78, s3, 12
              s_mul_i32 s79, s3, 3072
              s_add_u32 s79, s79, 32768
              """)
        XO, WO, XR, AR = 140, 144, 147, 151
        a(f"""v_lshrrev_b32 v3, 3, v1
              v_mul_u32_u24 v3, 1280, v3
              v_and_b32 v4, 7, v1
              v_lshrrev_b32 v5, 4, v1
              v_xor_b32 v4, v4, v5
              v_lshl_add_u32 v{XO}, v4, 4, v3
              v_xor_b32 v4, 4, v4
              v_lshl_add_u32 v{XO+1}, v4, 4, v3
              v_add_u32 v{XO+1}, {10240-1024}, v{XO+1}
              v_add_u32 v{XO+2}, {2*(10240-1024)}, v{XO}
              v_add_u32 v{XO+3}, {2*(10240-1024)}, v{XO+1}
              s_mul_i32 s13, s3, 192""")
        for j in range(3):
            a(f"""v_add_u32 v3, s13, v1
                  v_add_u32 v3, {64*j}, v3
                  v_mul_u32_u24 v4, 5462, v3
                  v_lshrrev_b32 v4, 16, v4
                  v_mul_u32_u24 v5, 12, v4
                  v_sub_u32 v5, v3, v5
                  v_mul_u32_u24 v4, 3072, v4
                  v_lshl_add_u32 v{WO+j}, v5, 4, v4""")
            if j: a(f"v_subrev_u32 v{WO+j}, {1024*j}, v{WO+j}")
        self.kwait()
        self.srd(48, 16, 2621440); self.srd(52, 36, 1966080)
        tx = {}; tw = {}
        pol = self.par.get("pol", "")
        def dma_x(s):
            L = [f"s_add_u32 m0, s78, {(s % 2) * 16384}\nbuffer_load_dwordx4 v{XO}, {sX}, s72 offen {pol} lds"]
            for p in range(1, 4):
                L.append(f"buffer_load_dwordx4 v{XO+p}, {sX}, s72 offen offset:{1024*p} {pol} lds")
            def last():
                a(L[3]); tx[s] = a.vmt()
                a("s_add_u32 s72, s72, 128\ns_cmp_eq_u32 s72, s75\ns_cselect_b32 s72, s74, s72")
            return L[:3] + [last]
        def dma_w(s):
            L = [f"s_add_u32 m0, s79, {(s % 4) * 12288}\nbuffer_load_dwordx4 v{WO}, {sW1}, s73 offen {pol} lds"]
            for p in range(1, 3):
                L.append(f"buffer_load_dwordx4 v{WO+p}, {sW1}, s73 offen offset:{1024*p} {pol} lds")
            def last():
                a(L[2]); tw[s] = a.vmt()
                a("s_add_u32 s73, s73, 196608\ns_cmp_eq_u32 s73, s77\ns_cselect_b32 s73, s76, s73")
            return L[:2] + [last]
        def run(items):
            for it in items:
                if callable(it): it()
                elif it: a(it)
        run(dma_w(0)); run(dma_x(0)); run(dma_w(1)); run(dma_x(1)); run(dma_w(2))
        self.wssrd(); self.srd(60, 42, 2621440); self.srd(64, 40, 1280)
        a(f"""v_and_b32 v3, 31, v1
              v_lshrrev_b32 v4, 1, v3
              v_and_b32 v4, 7, v4
              v_lshrrev_b32 v5, 5, v1
              v_xor_b32 v4, v4, v5
              v_lshlrev_b32 v3, 7, v3
              v_add_u32 v3, s78, v3""")
        for j in range(4):
            a(f"v_xor_b32 v6, {2*j}, v4\nv_lshl_add_u32 v{XR+j}, v6, 4, v3")
        a(f"""v_lshrrev_b32 v5, 5, v1
              v_lshlrev_b32 v3, 3, v5
              v_bfe_u32 v4, v1, 2, 2
              v_add_u32 v3, v3, v4
              v_mul_u32_u24 v3, 192, v3
              v_bfe_u32 v4, v1, 4, 1
              v_lshl_add_u32 v3, v4, 5, v3
              v_and_b32 v4, 3, v1
              v_lshl_add_u32 v3, v4, 3, v3
              v_add_u32 v{AR}, 32768, v3
              v_lshlrev_b32 v2, 4, v1""")
        rm = self.P("rmode", 1)
        if rm == 0:
            a(f"""s_mul_i32 s70, s8, 3
              s_lshr_b32 s70, s70, 1
              s_mul_i32 s13, s7, 3
              s_add_u32 s70, s70, s13
              s_sub_u32 s13, s70, 12
              s_cmp_ge_u32 s70, 12
              s_cselect_b32 s70, s13, s70""")
        elif rm == 1: a("s_add_u32 s70, s7, s8\ns_and_b32 s70, s70, 1\ns_mul_i32 s70, s70, 6")
        elif rm == 2: a("s_mov_b32 s70, 0")
        elif rm == 3: a("s_and_b32 s70, s8, 1\ns_mul_i32 s70, s70, 6")
        elif rm == 4: a("s_and_b32 s70, s8, 3\ns_mul_i32 s70, s70, 3")
        a(f"""s_mul_i32 s6, s11, 48
              s_mul_i32 s7, s3, 12
              s_add_u32 s6, s6, s7
              s_lshl_b32 s6, s6, 12
              s_add_u32 s68, s6, {WS_HF}
              s_mul_i32 s13, s8, 48
              s_add_u32 s7, s7, s13
              s_mul_i32 s7, s7, 5120
              s_add_u32 s69, s7, {WS_W2F}
              s_mul_i32 s5, s70, 5120         ; r0 * 5120""")
        GX, GWT, GT = 108, 118, 152
        a(f"""s_lshl_b32 s13, s9, 2
              s_add_u32 s13, s13, s3
              s_lshl_b32 s13, s13, 4
              s_add_u32 s13, s13, s10
              s_lshl_b32 s14, s13, 4
              s_add_u32 s71, s14, {WS_G}
              s_mul_i32 s12, s13, 2560
              v_mul_u32_u24 v5, 40, v1
              v_and_b32 v4, 31, v1
              v_mul_u32_u24 v6, 40, v4
              s_lshl_b32 s14, s8, 5
              s_add_u32 s14, s14, s11
              s_lshl_b32 s14, s14, 2
              s_add_u32 s14, s14, s3
              s_lshl_b32 s14, s14, 5
              s_add_u32 s24, s14, {WS_FW}""")
        gl = [f"buffer_load_dwordx4 v[{GX}:{GX+3}], v5, {sX}, s12 offen",
              f"buffer_load_dwordx4 v[{GX+4}:{GX+7}], v5, {sX}, s12 offen offset:16",
              f"buffer_load_dwordx2 v[{GX+8}:{GX+9}], v5, {sX}, s12 offen offset:32",
              f"buffer_load_dwordx2 v[{GWT}:{GWT+1}], v6, {sGW}, 0 offen",
              f"buffer_load_dwordx4 v[{GWT+2}:{GWT+5}], v6, {sGW}, 0 offen offset:8",
              f"buffer_load_dwordx4 v[{GWT+6}:{GWT+9}], v6, {sGW}, 0 offen offset:24"]
        ACC = 176; XF = (224, 240); AF = 152
        def rd_x1(s, j):
            r = XF[s % 2] + 4 * j
            a(f"ds_read_b128 v[{r}:{r+3}], v{XR+j} offset:{(s % 2) * 16384}")
            return a.lgt()
        def jf(m):
            s, idx = divmod(m, 12)
            return (s, idx // 3, idx % 3) if s < 9 else (s, idx % 4, idx // 4)
        LA = 6
        lf = {}
        def rd_f(m):
            s, j, ft = jf(m)
            for h in range(2):
                r = AF + 4 * (m % LA) + 2 * h
                a(f"ds_read_b64_tr_b16 v[{r}:{r+1}], v{AR} offset:{(s % 4) * 12288 + (16*j + 4*h) * 192 + 64*ft}")
            lf[m] = a.lgt()
        g0, g1, t0 = GT + 2, GT + 3, GT + 4
        gate = [f"v_mov_b32 v{g0}, 0", f"v_mov_b32 v{g1}, 0", "s_mov_b32 s26, 0xffff0000"]
        for i in range(0, 10, 2):
            for k in range(2):
                x, w, t = GX + i + k, GWT + i + k, t0 + 4 * k
                gate += [f"v_lshlrev_b32 v{t}, 16, v{x}", f"v_and_b32 v{t+1}, s26, v{x}",
                         f"v_lshlrev_b32 v{t+2}, 16, v{w}", f"v_and_b32 v{t+3}, s26, v{w}"]
            for k in range(2):
                t = t0 + 4 * k
                gate += [f"v_mul_f32 v{t}, v{t}, v{t+2}", f"v_mul_f32 v{t+1}, v{t+1}, v{t+3}"]
            for k in range(2):
                t = t0 + 4 * k
                gate += [f"v_cvt_pk_bf16_f32 v{t}, 0, v{t}", f"v_cvt_pk_bf16_f32 v{t+1}, 0, v{t+1}"]
            for k in range(2):
                t = t0 + 4 * k
                gate += [f"v_add_f32 v{g0}, v{g0}, v{t}", f"v_add_f32 v{g1}, v{g1}, v{t+1}"]
        gate += [f"v_add_f32 v{g0}, v{g0}, v{g1}", f"v_and_b32 v{t0}, 31, v1", f"v_lshrrev_b32 v{t0+1}, 5, v1",
                 f"v_add_f32_dpp v{g0}, v{g0}, v{g0} row_shr:1 row_mask:0xf bank_mask:0xf bound_ctrl:0",
                 f"v_lshlrev_b32 v{t0+1}, 3, v{t0+1}", f"v_cmp_eq_u32 vcc, 31, v{t0}",
                 f"v_add_f32_dpp v{g0}, v{g0}, v{g0} row_shr:2 row_mask:0xf bank_mask:0xf bound_ctrl:0",
                 f"v_cndmask_b32 v{t0+1}, -1, v{t0+1}, vcc", f"v_mov_b32 v{g1}, {TAG}",
                 f"v_add_f32_dpp v{g0}, v{g0}, v{g0} row_shr:4 row_mask:0xf bank_mask:0xf bound_ctrl:0",
                 f"v_add_f32_dpp v{g0}, v{g0}, v{g0} row_shr:8 row_mask:0xf bank_mask:0xf bound_ctrl:0",
                 f"v_add_f32_dpp v{g0}, v{g0}, v{g0} row_bcast:15 row_mask:0xa bank_mask:0xf",
                 f"v_cvt_pk_bf16_f32 v{g0}, 0, v{g0}",
                 f"v_mul_f32 v{g0}, {f32(-LOG2E)}, v{g0}",
                 f"v_exp_f32 v{g0}, v{g0}",
                 f"v_add_f32 v{g0}, 1.0, v{g0}",
                 f"v_rcp_f32 v{g0}, v{g0}",
                 f"v_cvt_pk_bf16_f32 v{g0}, 0, v{g0}",
                 f"buffer_store_dwordx2 v[{g0}:{g1}], v{t0+1}, {sWS}, s71 offen sc1"]
        RP = [0, 1, 6, 7, 8, 9]; LP = [2, 3, 4, 5]; SP = [10, 11]
        Wr = {}; Wt = {}; Hr = {}; Ht = {}; Wl = {}
        def woff(p, d):
            return f"""s_add_u32 {d}, s5, {p * 5120}
                       s_cmp_ge_u32 {d}, 61440
                       s_cselect_b32 s15, 61440, 0
                       s_sub_u32 {d}, {d}, s15
                       s_add_u32 {d}, {d}, s69"""
        def ld_w(p, mt, r, sreg):
            def f():
                if mt == 0: a(woff(p, sreg))
                if mt == 4: a(f"s_add_u32 {sreg}, {sreg}, 4096")
                Wr[(p, mt)] = r
                a(f"buffer_load_dwordx4 v[{r}:{r+3}], v2, {sWS}, {sreg} offen offset:{1024*(mt % 4)} sc1")
                Wt[(p, mt)] = a.vmt()
            return f
        wpre = [ld_w(p, mt, 8 + 4 * (5 * k + mt), "s25") for k, p in enumerate(RP) for mt in range(5)]
        wlast = wpre[25:]; wpre = wpre[:25]
        self.stamp("1")
        a.wait(vm=tx[0])
        self.stamp("c1")
        for j in range(4): lx = rd_x1(0, j)
        a("s_barrier")
        self.stamp("c1d")
        for m in range(LA): rd_f(m)
        S_W0 = self.P("sw0", 7); WGAP = self.P("wgap", 2); NPRE = self.P("npre", 16)
        BAR = self.P("bar", 6)
        assert BAR <= 7
        HPK = (128, 136, 144)
        def pack(ft):
            L = []
            for c in range(2):
                r = HPK[ft] + 4 * c
                for i in range(4):
                    s0 = ACC + 16 * ft + 8 * c + 2 * i
                    L.append(f"v_cvt_pk_bf16_f32 v{r+i}, v{s0}, v{s0+1}")
                for i in range(4): L.append(f"v_pk_max_i16 v{r+i}, v{r+i}, 0")
                L.append(f"buffer_store_dwordx4 v[{r}:{r+3}], v3, {sWS}, s13 offen offset:{256*c} sc1")
            if ft < 2: L.append("s_add_u32 s13, s13, 4096")
            return L
        FWS = [("s24", 0, 8)]
        def sync_point(s):
            if 3 <= s <= 6: self.stamp("3")
            a.wait(vm=max(tx[s + 1], tw[s + 1]))
            if 3 <= s <= 6: self.stamp("3")
            if s == S_W0 - 1:
                a(f"s_waitcnt lgkmcnt(0)\ns_add_u32 {TAG}, {TAG}, 1")
            a("s_barrier")
            self.stamp("1" + ("3" if 3 <= s <= 6 else "") + ("d" if s in (0, 8) else ""))
            if s == S_W0 - 2: self.sloads(FWS, 16)
            if s == S_W0 - 1 and not noC: self.spoll(FWS, 16, use=[0, 1, 2, 3, 4, 5], first_loaded=True, sleep=self.P("wsleep", 2), prio=self.P("gp1", 3))
        hst = f"""s_lshl_b32 s13, s9, 1
              s_lshr_b32 s6, s3, 1
              s_add_u32 s13, s13, s6          ; rb2'
              s_lshl_b32 s7, s13, 5
              s_lshr_b32 s6, s10, 2
              s_add_u32 s7, s7, s6
              s_lshl_b32 s7, s7, 5            ; flag line of replica 0
              s_mul_i32 s13, s13, 48
              s_mul_i32 s6, s10, 3
              s_add_u32 s13, s13, s6
              s_lshl_b32 s13, s13, 12
              s_and_b32 s6, s3, 1
              s_lshl_b32 s14, s6, 2
              s_add_u32 s7, s7, s14
              s_lshl_b32 s6, s6, 11
              s_add_u32 s13, s13, s6
              s_add_u32 s13, s13, {WS_HF}
              s_and_b32 s6, s10, 3
              s_lshl_b32 s6, s6, 3
              s_add_u32 s7, s7, s6
              s_add_u32 s7, s7, {WS_FH}      ; FH flag offset
              v_bfe_u32 v3, v1, 4, 1
              v_lshlrev_b32 v3, 10, v3
              v_lshrrev_b32 v4, 5, v1
              v_lshl_add_u32 v3, v4, 9, v3
              v_and_b32 v4, 15, v1
              v_lshl_add_u32 v3, v4, 4, v3""".split("\n")
        ex = []; xr = []; fill = []; npre = 0; sincew = 99
        for m in range(120):
            s, j, ft = jf(m); idx = m % 12
            if idx == 0:
                a.wait(lg=max(lx, lf[m]))
                if s + 2 < 10: ex += dma_x(s + 2)
                if s == 8: ex += gl; fill += hst
            else: a.wait(lg=lf[m])
            if m == 119: a("s_barrier")
            d = ACC + 16 * ft
            c = "0" if (s == 0 and j == 0) else f"v[{d}:{d+15}]"
            af = AF + 4 * (m % LA); xf = XF[s % 2] + 4 * j
            a(f"v_mfma_f32_32x32x16_bf16 v[{d}:{d+15}], v[{af}:{af+3}], v[{xf}:{xf+3}], {c}")
            if idx + 1 == BAR and s < 9:
                sync_point(s)
                xr = [(s + 1, jj) for jj in range(4)]
                if s + 3 < 10:
                    w3 = dma_w(s + 3); ex += [None, w3[0], None, w3[1], None, w3[2]]
            if m + LA < 120: rd_f(m + LA)
            if xr: lx = rd_x1(*xr.pop(0))
            if s == 9 and idx == 5: fill += pack(0)
            if s == 9 and idx == 9: fill += pack(1)
            sincew += 1
            it = ex.pop(0) if ex else None
            if it is not None: run([it])
            elif s >= S_W0 and npre < NPRE and sincew >= WGAP and not (s == 9 and idx >= 5):
                run([wpre.pop(0)]); npre += 1; sincew = 0
            n = 5 if s == 9 else 3
            run(fill[:n]); fill = fill[n:]
        assert not [e for e in ex if e is not None]
        tg = a.vmt()
        self.stamp("d")
        run(fill)
        self.stamp("c1d")
        run(pack(2))
        th = a.vmt()
        if self.P("gp2", 1) != self.P("gp1", 3): a(f"s_setprio {self.P('gp2', 1)}")
        dl = []
        for k, p in enumerate(LP):
            for mt in range(5):
                def f(k=k, p=p, mt=mt):
                    if mt == 0:
                        a(woff(p, "s14"))
                        if k < 3: a(f"s_mul_i32 s6, s3, 15360\ns_add_u32 m0, s6, {5120 * k}")
                        else: a(f"s_mul_i32 s6, s3, 5120\ns_add_u32 m0, s6, 61440")
                    if mt == 4: a(f"s_add_u32 s14, s14, 4096\ns_add_u32 m0, m0, 4096")
                    a(f"buffer_load_dwordx4 v2, {sWS}, s14 offen offset:{1024*(mt % 4)} sc1 lds")
                    Wl[(p, mt)] = a.vmt()
                dl.append(f)
        rest = wpre + dl
        nb = self.P("nb", 10)
        a.wait(vm=tg)
        per = max(1, len(gate) // (nb + 1))
        while gate:
            run(gate[:per]); gate = gate[per:]
            if nb and rest and gate: run([rest.pop(0)]); nb -= 1
        a.wait(vm=th)
        self.flag("s7", 4, 0xff)
        if "dup" in self.par:
            a(f"s_add_u32 s13, s13, {0x1000000 - WS_HF - 8192}")
            for ft in range(3):
                for c in range(2):
                    r = HPK[ft] + 4 * c
                    a(f"buffer_store_dwordx4 v[{r}:{r+3}], v3, {sWS}, s13 offen offset:{256*c} {self.par['dup'].replace('_', ' ')}")
                a("s_add_u32 s13, s13, 4096")
        self.stamp("c1d")
        run(rest); run(wlast)
        for i in range(4):
            a(f"""s_add_u32 s6, s3, {i + 1}
                  s_and_b32 s6, s6, 3
                  s_lshl_b32 s6, s6, 10
                  v_add_u32 v{4+i}, s6, v2""")
        a(f"""s_lshl_b32 s13, s70, 12
              s_add_u32 s72, s68, s13         ; h ptr
              s_add_u32 s74, s68, {12*4096}
              s_mul_i32 s6, s3, 15360
              v_add_u32 v3, s6, v2
              s_mul_i32 s6, s3, 5120
              s_add_u32 s6, s6, 61440
              v_add_u32 v0, s6, v2
              s_lshl_b32 s13, s11, 3
              s_add_u32 s13, s13, s8
              s_lshl_b32 s13, s13, 2
              s_add_u32 s13, s13, s3
              s_lshl_b32 s13, s13, 5
              s_add_u32 s13, s13, {WS_FH}""")
        self.spoll([("s13", 0, 8)], sleep=self.P("hsleep", 1), prio=self.P("gp2", 1))
        self.stamp("c2d")
        A2 = 176
        def ld_h(p, i, r):
            Hr[(p, i)] = r
            a(f"buffer_load_dwordx4 v[{r}:{r+3}], v{4+i}, {sWS}, s72 offen sc1")
            Ht[(p, i)] = a.vmt()
            if i == 3: a("s_add_u32 s72, s72, 4096\ns_cmp_eq_u32 s72, s74\ns_cselect_b32 s72, s68, s72")
        for p in range(3):
            for i in range(4): ld_h(p, i, 128 + 4 * (4 * p + i))
        GQ = [("h", p, i) for p in range(3, 9) for i in range(4)] + [("s", 10, mt) for mt in range(5)] + \
             [("h", 9, i) for i in range(4)] + [("s", 11, mt) for mt in range(5)] + \
             [("h", p, i) for p in (10, 11) for i in range(4)]
        Lt = {}
        spare = []
        def freed(r, p, isw, mt=None):
            if isw and (p + 1) in LP:
                k = LP.index(p + 1)
                a.wait(vm=Wl[(p + 1, mt)])
                if k < 3: a(f"ds_read_b128 v[{r}:{r+3}], v3 offset:{5120*k + 1024*mt}")
                else: a(f"ds_read_b128 v[{r}:{r+3}], v0 offset:{1024*mt}")
                Wr[(p + 1, mt)] = r; Lt[(p + 1, mt)] = a.lgt()
            elif GQ:
                kind, pp, x = GQ.pop(0)
                if kind == "h": ld_h(pp, x, r)
                else: ld_w(pp, x, r, "s14")()
            else: spare.append(r)
        def mf(p, mt, i):
            d = A2 + (i * 5 + mt) * 4
            c = "0" if p == 0 else f"v[{d}:{d+3}]"
            w, h = Wr[(p, mt)], Hr[(p, i)]
            a(f"v_mfma_f32_16x16x32_bf16 v[{d}:{d+3}], v[{w}:{w+3}], v[{h}:{h+3}], {c}")
        def need_w(p, mt, also=None):
            if p in LP:
                a.wait(vm=also, lg=Lt[(p, mt)])
            else:
                a.wait(vm=max(Wt[(p, mt)], also or 0))
        for p in range(9):
            for mt in range(5):
                if mt == 0:
                    for i in range(4):
                        need_w(p, mt, Ht[(p, i)]); mf(p, mt, i)
                else:
                    need_w(p, mt)
                    for i in range(4): mf(p, mt, i)
                freed(Wr[(p, mt)], p, True, mt)
            for i in range(4): freed(Hr[(p, i)], p, False)
            self.stamp("2")
            if p == 7:
                assert not GQ
                T = spare.pop(0); GV = spare.pop(0)
                a(f"""s_mul_i32 s6, s11, {FAS}
                      s_mul_i32 s12, s8, 320
                      s_add_u32 s12, s12, s6
                      s_add_u32 s12, s12, {WS_FA}
                      v_min_u32 v{T}, 39, v1
                      v_lshlrev_b32 v{T}, 3, v{T}
                      s_lshl_b32 s13, s11, 2
                      s_add_u32 s13, s13, s3
                      s_lshl_b32 s13, s13, 7
                      s_add_u32 s77, s13, {WS_G}
                      v_and_b32 v{T+1}, 15, v1
                      v_lshlrev_b32 v{T+1}, 3, v{T+1}
                      buffer_load_dwordx2 v[{GV}:{GV+1}], v{T+1}, {sWS}, s77 offen sc1""")
                self.pload(T, T + 2, "s12", 2, cond=False)
                tfa = a.vmt()
                a(f"""s_mul_i32 s13, s8, 80
                      s_lshl_b32 s6, s3, 4
                      s_add_u32 s13, s13, s6
                      s_lshl_b32 s13, s13, 12
                      s_lshl_b32 s6, s11, 7
                      s_add_u32 s13, s13, s6
                      s_add_u32 s73, s13, {WS_AT}
                      v_lshrrev_b32 v{GV+2}, 3, v1
                      v_lshlrev_b32 v{GV+2}, 12, v{GV+2}
                      v_and_b32 v{GV+3}, 7, v1
                      v_lshl_add_u32 v{GV+2}, v{GV+3}, 4, v{GV+2}
                      s_mul_i32 s75, s3, 5120
                      s_add_u32 s75, s75, 61440""")
        def at_dma():
            Lk = a.label("skipd")
            a(f"""s_mov_b32 m0, s75
                  s_add_u32 s13, s73, {8*4096 - 1024}
                  buffer_load_dwordx4 v{GV+2}, {sWS}, s73 offen sc1 lds ; cond
                  buffer_load_dwordx4 v{GV+2}, {sWS}, s13 offen offset:1024 sc1 lds ; cond
                  s_cmp_lg_u32 s3, 0
                  s_cbranch_scc1 {Lk}
                  s_add_u32 s13, s73, {64*4096 - 2048}
                  s_add_u32 s14, s73, {72*4096 - 3072}
                  buffer_load_dwordx4 v{GV+2}, {sWS}, s13 offen offset:2048 sc1 lds ; cond
                  buffer_load_dwordx4 v{GV+2}, {sWS}, s14 offen offset:3072 sc1 lds ; cond
                  {Lk}:""")
        a.wait(vm=tfa)
        Lna = a.label("noat")
        a("s_mov_b32 s76, 0")
        if not noC:
            self.chk(T + 2, 2)
            a(f"s_cbranch_vccnz {Lna}")
        at_dma()
        a(f"s_mov_b32 s76, 1\n{Lna}:")
        self.stamp("c2")
        fill = []
        for i in range(4):
            for p in (9, 10, 11):
                for mt in range(5):
                    mf(p, mt, i)
                    if fill and (p, mt) != (9, 0) and mt % 2 == 1: a(fill.pop(0))
            assert not fill
            if i < 3:
                for mt in range(5):
                    d = A2 + (i * 5 + mt) * 4
                    fill.append(f"ds_write_b128 v3, v[{d}:{d+3}] offset:{5120*i + 1024*mt}")
        self.stamp("2")
        Lha = a.label("hasat")
        a(f"s_cmp_eq_u32 s76, 1\ns_cbranch_scc1 {Lha}")
        self.poll(T, T + 2, soff="s12", w=2)
        at_dma()
        a(f"{Lha}:")
        Lg = a.label("gp"); Lgd = a.label("gd")
        a(f"""s_mov_b32 s15, {SPIN}
              {Lg}:
              v_cmp_ne_u32 vcc, {TAG}, v{GV+1}
              s_cbranch_vccz {Lgd}
              buffer_load_dwordx2 v[{GV}:{GV+1}], v{T+1}, {sWS}, s77 offen sc1 ; cond
              s_waitcnt vmcnt(0) ; cond
              s_sub_u32 s15, s15, 1
              s_cbranch_scc0 {Lg}
              {Lgd}:""")
        for i in range(3):
            a(f"""s_sub_u32 s6, s3, {i + 1}
                  s_and_b32 s6, s6, 3
                  s_mul_i32 s6, s6, 15360
                  s_add_u32 s6, s6, {5120 * i}
                  v_add_u32 v{4+i}, s6, v2""")
        a(f"""v_lshrrev_b32 v7, 2, v1
              v_lshlrev_b32 v7, 7, v7
              v_and_b32 v0, 3, v1
              v_lshl_add_u32 v7, v0, 3, v7
              s_lshl_b32 s13, s3, 5
              s_add_u32 s13, s13, 61440
              v_add_u32 v7, s13, v7
              s_waitcnt vmcnt(0) lgkmcnt(0)
              s_barrier""")
        self.stamp("c2")
        OWN = A2 + 60
        pool = [r for r in range(8, 176, 4) if r not in (GV,)]
        RD = {}
        AA = [pool.pop(0) for _ in range(3)]
        aa = lambda mt: AA[mt // 2] + 2 * (mt % 2)
        for mt in range(5):
            a(f"ds_read_b64_tr_b16 v[{aa(mt)}:{aa(mt)+1}], v7 offset:{5120*mt if mt < 4 else 2048}")
        tA = a.lgt(); tR = {}
        def rdp(i):
            for mt in range(5):
                r = pool.pop(0); RD[(i, mt)] = r
                a(f"ds_read_b128 v[{r}:{r+3}], v{4+i} offset:{1024*mt}")
            tR[i] = a.lgt()
        rdp(0); rdp(1)
        G = GV; OM = GV + 2
        a(f"""v_mov_b32 v{G+1}, v{G}
              v_sub_f32 v{OM}, 1.0, v{G}
              s_mov_b32 s13, 0xffff0000
              v_cvt_pk_bf16_f32 v{OM}, 0, v{OM}""")
        a.wait(lg=tA); rdp(2)
        a(f"v_mov_b32 v{OM+1}, v{OM}")
        GA = [pool.pop(0) for _ in range(5)]
        for mt in range(5):
            r = GA[mt]
            for i in range(2):
                a(f"v_lshlrev_b32 v{r+2*i}, 16, v{aa(mt)+i}\nv_and_b32 v{r+2*i+1}, s13, v{aa(mt)+i}")
            for i in range(2):
                a(f"v_pk_mul_f32 v[{r+2*i}:{r+2*i+1}], v[{r+2*i}:{r+2*i+1}], v[{G}:{G+1}]")
            for i in range(4): a(f"v_cvt_pk_bf16_f32 v{r+i}, 0, v{r+i}")
        for i in range(3):
            a.wait(lg=tR[i])
            for mt in range(5):
                for k in (0, 2):
                    o = OWN + 4 * mt + k; r = RD[(i, mt)] + k
                    a(f"v_pk_add_f32 v[{o}:{o+1}], v[{o}:{o+1}], v[{r}:{r+1}]")
        a(f"""s_lshl_b32 s13, s11, 2
              s_add_u32 s13, s13, s3
              s_mul_i32 s13, s13, {16*1280}
              s_mul_i32 s14, s8, 160
              s_add_u32 s13, s13, s14
              v_and_b32 v3, 15, v1
              v_mul_u32_u24 v3, 1280, v3
              v_lshrrev_b32 v5, 4, v1
              v_lshl_add_u32 v4, v5, 3, v3      ; tile4: + 8*g4
              v_bfe_u32 v5, v1, 4, 1
              v_lshl_add_u32 v3, v5, 5, v3
              v_lshrrev_b32 v5, 5, v1
              v_lshl_add_u32 v3, v5, 4, v3""")
        OP = A2
        for mt in range(5):
            o = OWN + 4 * mt; r = GA[mt]
            for i in range(4): a(f"v_cvt_pk_bf16_f32 v{o+i}, 0, v{o+i}")
            for k in (0, 2): a(f"v_pk_mul_f32 v[{o+k}:{o+k+1}], v[{o+k}:{o+k+1}], v[{OM}:{OM+1}]")
            for i in range(4): a(f"v_cvt_pk_bf16_f32 v{o+i}, 0, v{o+i}")
            for k in (0, 2): a(f"v_pk_add_f32 v[{o+k}:{o+k+1}], v[{o+k}:{o+k+1}], v[{r+k}:{r+k+1}]")
            for i in range(2): a(f"v_cvt_pk_bf16_f32 v{OP+2*mt+i}, v{o+2*i}, v{o+2*i+1}")
            if mt % 2 == 1:
                p = OP + 2 * (mt - 1)
                a(f"v_permlane16_swap_b32 v{p}, v{p+2}\nv_permlane16_swap_b32 v{p+1}, v{p+3}")
                a(f"buffer_store_dwordx4 v[{p}:{p+3}], v3, {sOUT}, s13 offen offset:{32*(mt-1)}")
        a(f"buffer_store_dwordx2 v[{OP+8}:{OP+9}], v4, {sOUT}, s13 offen offset:128")
        self.end()

    def conv_addr(self, chs, va, vb):
        self.a(f"""s_mul_i32 s13, {chs}, {VSTR}
              s_mul_i32 s14, {chs}, {CSTR}
              s_add_u32 s14, s14, {CPB}
              v_bfe_u32 v6, v1, 2, 2
              v_mul_u32_u24 v7, {CPY}, v6
              v_add_u32 v7, s14, v7
              v_mov_b32 v{va}, s13
              v_cmp_eq_u32 vcc, 3, v6
              v_and_b32 v6, 3, v1
              v_cndmask_b32 v{va}, v7, v{va}, vcc
              v_lshl_add_u32 v{va}, v6, 3, v{va}
              v_lshrrev_b32 v7, 4, v1
              v_lshlrev_b32 v7, 4, v7
              v_sub_u32 v{va}, v{va}, v7
              v_add_u32 v{va}, 32, v{va}
              v_and_b32 v6, 15, v1
              v_lshl_add_u32 v{vb}, v6, 5, v7
              s_add_u32 s13, s13, {KXO}
              v_add_u32 v{vb}, s13, v{vb}""")
    def conv(self, tiles, acc, AS, BS, va, vb, aoff, boff, fill, first_issued=None, nxt=None, fper=1):
        a = self.a
        nf = max(tiles) + 1
        def reads(q, aoff, boff):
            L = []; g = q % 2
            for k in range(nf):
                L.append(f"ds_read_b128 v[{BS[g]+4*k}:{BS[g]+4*k+3}], v{vb} offset:{boff + 64*(8*k+q)}")
                for h in range(2):
                    r = AS[g] + 4 * k + 2 * h
                    L.append(f"ds_read_b64_tr_b16 v[{r}:{r+1}], v{va} offset:{512*k + 480 - 64*q - 8*h}".replace(f"v{va} ", f"v{aoff} "))
            return L
        if first_issued is None:
            for t in reads(0, aoff, boff): a(t)
            tq = a.lgt()
        else: tq = first_issued
        seen = set()
        for q in range(8):
            g = q % 2
            if q < 7: nx = reads(q + 1, aoff, boff)
            elif nxt is not None: nx = reads(0, nxt[0], nxt[1])
            else: nx = []
            a.wait(lg=tq)
            pairs = [(m, r) for r in range(nf) for m in range(nf) if (m + r) in tiles]
            per = -(-len(nx) // len(pairs))
            for (m, r) in pairs:
                d = acc[m + r]
                c = f"v[{d}:{d+3}]" if (m + r) in seen else "0"
                seen.add(m + r)
                a(f"v_mfma_f32_16x16x32_bf16 v[{d}:{d+3}], v[{AS[g]+4*m}:{AS[g]+4*m+3}], v[{BS[g]+4*r}:{BS[g]+4*r+3}], {c}")
                for _ in range(per):
                    if nx: a(nx.pop(0))
                if q >= 1:
                    for _ in range(fper):
                        if fill:
                            it = fill.pop(0)
                            it() if callable(it) else a(it)
            tq = a.lgt()
        return tq
    def ud_fill(self, uregs, ud, dsk):
        L = []
        for i in range(2):
            L += [f"v_lshlrev_b32 v{ud+2*i}, 16, v{uregs+i}", f"v_and_b32 v{ud+2*i+1}, s12, v{uregs+i}"]
        L += [f"v_mul_f32 v{ud+i}, v{dsk}, v{ud+i}" for i in range(4)]
        L += [f"v_cvt_pk_bf16_f32 v{ud+i}, 0, v{ud+i}" for i in range(4)]
        return L
    def epi_pair(self, y0, y1, ud0, ud1, o, vaddr, soff, off):
        L = []
        for k, (y, ud) in enumerate(((y0, ud0), (y1, ud1))):
            L += [f"v_cvt_pk_bf16_f32 v{y+i}, 0, v{y+i}" for i in range(4)]
            L += [f"v_add_f32 v{y+i}, v{y+i}, v{ud+i}" for i in range(4)]
            L += [f"v_cvt_pk_bf16_f32 v{o+2*k+i}, v{y+2*i}, v{y+2*i+1}" for i in range(2)]
        L += [f"v_permlane16_swap_b32 v{o}, v{o+2}", f"v_permlane16_swap_b32 v{o+1}, v{o+3}",
              f"buffer_store_dwordx4 v[{o}:{o+3}], v{vaddr}, {sWS}, {soff} offen offset:{off} sc1"]
        return L

    def role_c(self):
        a = self.a
        a(f"""LC:
              s_and_b32 s5, s2, 255          ; q = 32 j + k
              s_lshr_b32 s68, s5, 5          ; j
              s_and_b32 s69, s5, 31          ; k
              s_mul_i32 s6, s69, 3
              s_lshl_b32 s7, s69, 1
              s_add_u32 s7, s7, 16
              s_cmp_lt_u32 s69, 16
              s_cselect_b32 s6, s6, s7
              s_cselect_b32 s7, 3, 2         ; nch
              s_mul_i32 s8, s68, 80
              s_add_u32 s6, s6, s8
              s_cmp_eq_u32 s3, 3
              s_cbranch_scc1 {"Lexit" if self.opts & {"cK", "cA"} else "LW3"}
              s_cmp_ge_u32 s3, s7
              s_cbranch_scc1 {"Lexit" if self.opts & {"cK", "cW"} else "LAUX"}
              {"s_branch Lexit" if self.opts & {"cM", "cW", "cA"} else ""}
              s_add_u32 s6, s6, s3           ; channel
              s_mul_i32 s8, s3, {VSTR}       ; V base""")
        if self.P("kp", 0): a(f"s_setprio {self.P('kp', 0)}")
        P = 8
        VF = 5; PL = 40
        a(f"""s_mul_i32 s9, s6, 384
              v_mul_u32_u24 v2, 3, v1
              v_and_b32 v2, 0xfe, v2
              v_lshl_add_u32 v2, v2, 1, s9
              s_lshl_b32 s10, s6, 1
              s_and_b32 s10, s10, 0xfffc
              s_mov_b32 m0, s8
              v_and_b32 v6, 15, v1
              v_mul_u32_u24 v6, 800, v6
              v_lshrrev_b32 v7, 4, v1
              v_lshl_add_u32 v6, v7, 4, v6
              v_add_u32 v{VF}, s8, v6
              v_and_b32 v3, 1, v1
              v_lshlrev_b32 v3, 4, v3            ; 16 * parity
              v_sub_u32 v4, 16, v3
              s_mov_b32 s12, 0xffff0000""")
        self.kwait()
        for k in range(6):
            a(f"global_load_dwordx2 v[{PL+2*k}:{PL+2*k+1}], v2, s[{18+2*k}:{19+2*k}]")
            if k == 1: t_a = a.vmt()
        a(f"s_load_dword s70, s[30:31], s10\ns_load_dword s71, s[32:33], s10")
        self.wssrd()
        a(f"v_mov_b32 v6, 0x3f80")
        for g in range(3): a(f"ds_write_addtid_b32 v6 offset:{256*g}")
        def unp(k):
            d = P + 3 * k; l = PL + 2 * k
            a(f"""v_alignbit_b32 v{d+1}, v{l+1}, v{l}, v3
                  v_lshlrev_b32 v{d+2}, v4, v{l+1}
                  v_lshlrev_b32 v{d}, 16, v{d+1}
                  v_and_b32 v{d+1}, s12, v{d+1}
                  v_and_b32 v{d+2}, s12, v{d+2}""")
        a(f"""s_waitcnt lgkmcnt(0)
              s_add_u32 {TAG}, {TAG}, 1
              s_and_b32 s10, s6, 1
              s_lshl_b32 s10, s10, 4
              s_lshr_b32 s70, s70, s10
              s_lshl_b32 s70, s70, 16
              s_lshr_b32 s71, s71, s10
              s_lshl_b32 s71, s71, 16
              v_mov_b32 v{P+18}, s70
              v_mov_b32 v{P+19}, s71""")
        DT = P + 18; DSK = P + 19
        Lhi = struct.unpack("<f", struct.pack("<f", LOG2E))[0]; Llo = LOG2E - Lhi
        a(f"""s_mov_b32 s11, {f32(Lhi)}
              v_mul_f32 v6, s11, v{DT}
              v_fma_f32 v7, v{DT}, s11, -v6
              v_fmac_f32 v7, {f32(Llo)}, v{DT}
              v_exp_f32 v6, v6
              v_mul_f32 v7, {f32(0.6931471805599453)}, v7
              v_fmac_f32 v6, v6, v7
              v_cvt_pk_bf16_f32 v{DT}, 0, v6""")
        a.wait(vm=t_a)
        self.stamp("ck")
        unp(0); unp(1)
        A2, W = P, P + 3
        for g in range(3):
            a(f"v_mul_f32 v{A2+g}, v{DT}, v{A2+g}\nv_mul_f32 v{W+g}, v{DT}, v{W+g}")
        for g in range(3):
            a(f"v_mul_f32 v{A2+g}, s11, v{A2+g}\nv_mul_f32 v{W+g}, 0.15915494309189535, v{W+g}")
        nxt = [52]
        def alloc():
            r = nxt[0]; nxt[0] += 6; assert nxt[0] <= 128; return r
        TMP = alloc(); PK = 28
        mq = []; cnt = [0]
        def v(t):
            a(t); cnt[0] += 1
            if mq and cnt[0] % 5 == 0: mq.pop(0)()
        def cmul(z, p, q, conj=False):
            if not conj:
                for g in range(3): v(f"v_mul_f32 v{z+2*g}, v{p+2*g}, v{q+2*g}")
                for g in range(3): v(f"v_mul_f32 v{z+2*g+1}, v{p+2*g}, v{q+2*g+1}")
                for g in range(3): v(f"v_fma_f32 v{z+2*g}, -v{p+2*g+1}, v{q+2*g+1}, v{z+2*g}")
                for g in range(3): v(f"v_fmac_f32 v{z+2*g+1}, v{p+2*g+1}, v{q+2*g}")
            else:
                for g in range(3): v(f"v_mul_f32 v{z+2*g}, v{p+2*g}, v{q+2*g}")
                for g in range(3): v(f"v_mul_f32 v{z+2*g+1}, v{p+2*g+1}, v{q+2*g}")
                for g in range(3): v(f"v_fmac_f32 v{z+2*g}, v{p+2*g+1}, v{q+2*g+1}")
                for g in range(3): v(f"v_fma_f32 v{z+2*g+1}, -v{p+2*g}, v{q+2*g+1}, v{z+2*g+1}")
        def put(z, vec):
            for g in range(3): v(f"v_cvt_pk_bf16_f32 v{PK+g}, v{z+2*g}, v{z+2*g+1}")
            for g in range(3): v(f"ds_write_addtid_b32 v{PK+g} offset:{vec*800 + 256*g}")
        def direct(z, l):
            lit = "1.0" if l == 1 else f32(float(l))
            for g in range(3):
                if l == 1: v(f"v_fract_f32 v{TMP+2*g}, v{W+g}\nv_exp_f32 v{TMP+2*g+1}, v{A2+g}")
                else: v(f"v_mul_f32 v{TMP+2*g}, {lit}, v{W+g}\nv_mul_f32 v{TMP+2*g+1}, {lit}, v{A2+g}")
            if l != 1:
                for g in range(3): v(f"v_fract_f32 v{TMP+2*g}, v{TMP+2*g}\nv_exp_f32 v{TMP+2*g+1}, v{TMP+2*g+1}")
            for g in range(3): v(f"v_cos_f32 v{z+2*g}, v{TMP+2*g}\nv_sin_f32 v{z+2*g+1}, v{TMP+2*g}")
            for g in range(3): v(f"v_mul_f32 v{z+2*g}, v{z+2*g}, v{TMP+2*g+1}\nv_mul_f32 v{z+2*g+1}, v{z+2*g+1}, v{TMP+2*g+1}")
        def frags(base):
            for ks in range(12):
                a(f"ds_read_b128 v[{base+4*ks}:{base+4*ks+3}], v{VF} offset:{64*ks}")
            return a.lgt()
        CF = 176; RF = 128; DK = 224
        def mm(t, trf):
            d = DK + 4 * t
            def one(ks):
                def f():
                    if ks == 0: a.wait(lg=trf)
                    c = "0" if ks == 0 else f"v[{d}:{d+3}]"
                    a(f"v_mfma_f32_16x16x32_bf16 v[{d}:{d+3}], v[{RF+4*ks}:{RF+4*ks+3}], v[{CF+4*ks}:{CF+4*ks+3}], {c}")
                return f
            return [one(ks) for ks in range(12)]
        E1 = alloc(); E2 = alloc(); E4 = alloc(); E8 = alloc(); E12 = alloc(); E16 = alloc(); Z0 = alloc(); Z1 = alloc()
        direct(E1, 1); put(E1, 1)
        cur = E1; named = {2: E2, 4: E4, 8: E8, 12: E12, 16: E16}
        for k in range(2, 17):
            z = named.get(k) or (Z0 if cur != Z0 else Z1)
            cmul(z, cur, E1)
            if k < 16: put(z, k)
            cur = z
        self.stamp("k")
        frags(RF)
        a("s_waitcnt vmcnt(0)")
        for k in range(2, 6): unp(k)
        for g in range(3):
            a(f"v_mul_f32 v{P+6+g}, v{DT}, v{P+6+g}\nv_mul_f32 v{P+9+g}, v{DT}, v{P+9+g}")
        for g in range(3):
            bre, bim, cre, cim = P + 6 + g, P + 9 + g, P + 12 + g, P + 15 + g
            a(f"""v_mul_f32 v{Z0+2*g}, v{cre}, v{bre}
                  v_mul_f32 v{Z0+2*g+1}, v{cre}, v{bim}""")
        for g in range(3):
            bre, bim, cre, cim = P + 6 + g, P + 9 + g, P + 12 + g, P + 15 + g
            a(f"""v_fma_f32 v{Z0+2*g}, -v{cim}, v{bim}, v{Z0+2*g}
                  v_fma_f32 v{Z0+2*g+1}, -v{cim}, v{bre}, -v{Z0+2*g+1}""")
        put(Z0, 0)
        cur, oth = Z0, Z1
        for r in range(1, 16):
            cmul(oth, cur, E16, conj=True); put(oth, r); cur, oth = oth, cur
        self.stamp("k")
        tcf = frags(CF)
        E256 = alloc(); E512 = alloc(); E768 = alloc()
        direct(E256, 256)
        mq += mm(0, tcf)
        put(E256, 0)
        cur = E256
        for i in range(1, 8):
            z = Z0 if cur != Z0 else Z1
            cmul(z, cur, E2); put(z, i); cur = z
        cmul(E512, E256, E256); put(E512, 8)
        cmul(E768, E512, E256); put(E768, 12)
        for b, row in ((E512, 8), (E768, 12)):
            for i, e in enumerate((E4, E8, E12)):
                z = Z0 if i % 2 == 0 else Z1
                cmul(z, b, e); put(z, row + 1 + i)
        assert not mq
        self.stamp("k")
        t1 = frags(RF)
        Eb = E1
        cmul(Eb, E512, E512)
        cmul(E2, E768, E768)
        mq += mm(1, t1)
        cmul(E4, Eb, E256)
        cmul(E12, E2, E256)
        for b, row in ((Eb, 0), (E4, 4), (E2, 8), (E12, 12)):
            put(b, row)
            cmul(Z0, b, E8); put(Z0, row + 1)
        cmul(Z1, Z0, E8); put(Z1, 14)
        while mq: mq.pop(0)()
        t2 = frags(RF)
        X = 32
        d0, d1, d2 = DK, DK + 4, DK + 8
        a(f"""s_add_u32 s9, s8, {KXO}
              v_and_b32 v6, 15, v1
              v_lshrrev_b32 v7, 4, v1
              v_lshl_add_u32 v6, v6, 5, s9           ; Kx + 32 r
              v_lshl_add_u32 v2, v7, 3, v6           ; seg0 (+480)
              v_lshl_add_u32 v4, v7, 4, v6           ; seg1 (+992)
              v_lshl_add_u32 v5, v7, 9, v6
              v_min_u32 v6, 29, v1
              v_lshl_add_u32 v6, v6, 4, s9
              v_mov_b32 v28, 0
              v_mov_b32 v29, 0
              v_mov_b32 v30, 0
              v_mov_b32 v31, 0
              v_cvt_pk_bf16_f32 v{X}, v{d0}, v{d0+1}
              v_cvt_pk_bf16_f32 v{X+1}, v{d0+2}, v{d0+3}
              s_waitcnt lgkmcnt(0)""")
        self.stamp("ck")
        if "cK" in self.opts: a("s_endpgm")
        a("s_barrier")
        self.stamp("ck")
        m2 = mm(2, a.lgt())
        NX, NA, NB, N1, N2 = X + 24, X + 25, X + 26, X + 27, X + 28
        pre = [f"ds_write_b128 v6, v[28:31]", f"ds_write_b64 v2, v[{X}:{X+1}] offset:480",
               f"v_mov_b32_dpp v{NX}, v{d1} wave_shl:1 {DPP}", f"v_mov_b32 v{NA}, v{d1}", "s_mov_b64 s[10:11], 0xffff",
               f"v_mov_b32 v{NB}, v{NX}", "s_mov_b32 s14, 0x7fff0000", "s_mov_b32 s15, 0",
               f"v_permlane16_swap_b32 v{NA}, v{NB}", "s_nop 0",
               f"v_cndmask_b32 v{N1}, v{NX}, v{NB}, s[10:11]", f"v_cndmask_b32 v{N1}, v{N1}, v{NA}, s[14:15]"]
        for f in m2:
            f()
            if pre: a(pre.pop(0))
        A_ = [d1, d1 + 1, d1 + 2, d1 + 3, N1]; B_ = [d2, d2 + 1, N2]
        def cv(r, pairs, src):
            for i, (lo, hi) in enumerate(pairs):
                a(f"v_cvt_pk_bf16_f32 v{r+i}, v{src[lo]}, v{src[hi]}")
        cv(X + 12, [(0,0),(1,2),(2,2),(3,4)], A_)
        cv(X + 16, [(0,0),(0,1),(1,1),(2,2),(2,2),(2,3),(3,3)], A_)
        a(f"""s_mov_b32 exec_hi, 0
              ds_write_b128 v4, v[{X+12}:{X+15}] offset:992
              s_mov_b64 exec, -1
              v_readlane_b32 s10, v{d2}, 0
              v_mov_b32 v{N2}, v{d2+2}
              v_writelane_b32 v{N1}, s10, 63
              v_mov_b32_dpp v{N2}, v{d2} wave_shl:1 {DPP}
              v_cvt_pk_bf16_f32 v{X+23}, v{N1}, v{N1}""")
        cv(X + 4, [(0,0),(0,0),(0,1),(1,1),(1,1),(1,1),(2,2),(2,2)], B_)
        a(f"""ds_write_b128 v5, v[{X+4}:{X+7}] offset:2528
              ds_write_b128 v5, v[{X+8}:{X+11}] offset:2544
              s_mov_b32 exec_lo, 0
              ds_write_b128 v5, v[{X+16}:{X+19}] offset:480
              ds_write_b128 v5, v[{X+20}:{X+23}] offset:496
              s_mov_b64 exec, -1""")
        self.conv_addr("s3", 3, 4)
        if self.dumpk:
            a(f"""s_waitcnt lgkmcnt(0)
                  v_lshl_add_u32 v6, v1, 4, s9
                  s_mul_i32 s10, s6, 4608
                  s_add_u32 s10, s10, {WS_K}
                  v_lshlrev_b32 v7, 4, v1""")
            for p in range(5):
                a(f"ds_read_b128 v[96:99], v6 offset:{1024*p}\ns_waitcnt lgkmcnt(0)")
                if p == 4: a("s_mov_b32 exec_hi, 0")
                a(f"buffer_store_dwordx4 v[96:99], v7, {sWS}, s10 offen\ns_add_u32 s10, s10, 1024\ns_waitcnt vmcnt(0)")
            a("s_mov_b64 exec, -1")
        a(f"""s_mul_i32 s14, s3, {CSTR}
              s_add_u32 s14, s14, {CPB + 32}
              v_and_b32 v6, 15, v1
              v_lshrrev_b32 v7, 4, v1
              v_lshl_add_u32 v5, v6, 5, s14
              v_lshl_add_u32 v5, v7, 3, v5
              v_lshlrev_b32 v6, 5, v6
              v_lshrrev_b32 v7, 5, v1
              v_lshl_add_u32 v6, v7, 4, v6
              v_bfe_u32 v7, v1, 4, 1
              v_lshl_add_u32 v2, v7, 9, v6          ; delta 1
              v_mul_u32_u24 v7, 1536, v7
              v_add_u32 v0, v7, v6                  ; delta 3
              s_mov_b32 s12, 0xffff0000
              s_lshl_b32 s9, s6, 12
              s_add_u32 s9, s9, {WS_AT}
              s_waitcnt lgkmcnt(0)
              s_barrier""")
        if self.P("cp", 2): a(f"s_setprio {self.P('cp', 2)}")
        self.stamp()
        tiles = [0, 1, 2, 5, 6, 7]
        acc = {n: 32 + 4 * i for i, n in enumerate(tiles)}
        UU = 8; UDR = 192 + 32
        ud = {n: 196 + 4 * i for i, n in enumerate(tiles)}
        for i, n in enumerate(tiles): a(f"ds_read_b64 v[{UU+2*i}:{UU+2*i+1}], v5 offset:{512*n}")
        fill = []
        for i, n in enumerate(tiles): fill += self.ud_fill(UU + 2 * i, ud[n], DSK)
        self.conv(tiles, acc, (64, 96), (128, 160), 3, 4, 3, 0, fill)
        assert not fill
        self.stamp()
        for k, (x, y, va) in enumerate(((0, 1, 2), (2, 5, 0), (6, 7, 2))):
            for t in self.epi_pair(acc[x], acc[y], ud[x], ud[y], 64 + 4 * k, va, "s9", 512 * x): a(t)
        a(f"""s_lshl_b32 s9, s6, 2
              s_add_u32 s9, s9, {WS_FA}
              s_waitcnt vmcnt(0)""")
        self.flag("s9", 8, 0xfff00fff, FAS)
        self.end()

    def wave3(self):
        a = self.a
        ST = CPB
        a("LW3:")
        if self.P("wp", 3): a(f"s_setprio {self.P('wp', 3)}")
        a(f"""s_and_b32 s8, s69, 7
              s_lshl_b32 s8, s8, 2
              s_lshr_b32 s9, s69, 3
              s_add_u32 s8, s8, s9           ; tb
              s_mul_i32 s11, s8, {64*1280}
              s_mul_i32 s12, s68, 160
              s_add_u32 s11, s11, s12        ; x offset
              s_add_u32 s12, s11, 5120
              s_mov_b32 s13, 1120
              s_mov_b32 s14, 5120""")
        for p in range(5):
            a(f"""v_add_u32 v2, {64*p}, v1
                  v_mul_u32_u24 v3, 6554, v2
                  v_lshlrev_b32 v2, 4, v2
                  v_lshrrev_b32 v3, 16, v3
                  v_mad_u32_u24 v2, v3, s13, v2
                  v_lshrrev_b32 v3, 2, v3
                  v_mad_u32_u24 v{16+p}, v3, s14, v2""")
        a(f"""s_lshl_b32 s10, s6, 1
              s_and_b32 s9, s10, 0xfffc
              s_min_u32 s9, s9, 1272
              s_sub_u32 s10, s10, s9
              s_lshl_b32 s10, s10, 3""")
        self.kwait()
        self.srd(48, 16, 2621440)
        for p in range(10):
            a(f"s_mov_b32 m0, {ST + 1024*p}\nbuffer_load_dwordx4 v{16 + p % 5}, {sX}, {'s11' if p < 5 else 's12'} offen lds")
        a("s_load_dwordx2 s[70:71], s[32:33], s9")
        self.wssrd()
        a(f"""v_lshrrev_b32 v3, 4, v1
              v_lshlrev_b32 v3, 1, v3
              v_bfe_u32 v4, v1, 1, 1
              v_add_u32 v3, v3, v4            ; tchunk
              v_lshlrev_b32 v3, 2, v3
              v_bfe_u32 v4, v1, 2, 2
              v_add_u32 v3, v3, v4            ; rho
              v_mul_u32_u24 v3, 160, v3
              v_and_b32 v4, 1, v1
              v_lshl_add_u32 v3, v4, 3, v3
              v_add_u32 v3, {ST}, v3
              v_and_b32 v4, 7, v1
              v_lshlrev_b32 v4, 12, v4
              v_lshrrev_b32 v5, 3, v1
              v_lshl_add_u32 v4, v5, 4, v4
              v_lshlrev_b32 v2, 4, v1
              s_mul_i32 s11, s68, {80*4096}
              s_lshl_b32 s12, s8, 7
              s_add_u32 s11, s11, s12
              s_add_u32 s11, s11, {WS_UT}
              s_waitcnt lgkmcnt(0)
              s_add_u32 {TAG}, {TAG}, 1
              s_lshr_b64 s[70:71], s[70:71], s10
              s_lshl_b32 s12, s70, 16
              v_mov_b32 v8, s12
              s_and_b32 s12, s70, 0xffff0000
              v_mov_b32 v9, s12
              s_lshl_b32 s12, s71, 16
              v_mov_b32 v10, s12
              s_waitcnt vmcnt(0)""")
        self.stamp()
        tr = []
        def trd(s):
            for h in range(2):
                a(f"ds_read_b64_tr_b16 v[{24+4*s+2*h}:{25+4*s+2*h}], v3 offset:{5120*h + 16*s}")
            tr.append(a.lgt())
        for s in range(6): trd(s)
        for s in range(10):
            a.wait(lg=tr[s])
            if "xns" not in self.opts: a(f"buffer_store_dwordx4 v[{24+4*s}:{27+4*s}], v4, {sWS}, s11 offen {self.par.get('xst', 'sc1').replace('_', ' ')}")
            if s < 9: a("s_add_u32 s11, s11, 32768")
            if s + 6 < 10: trd(s + 6)
        a(f"""s_lshl_b32 s9, s5, 7
              s_add_u32 s9, s9, {WS_FU}
              s_lshl_b32 s12, s68, 10
              s_add_u32 s12, s12, s69
              s_lshl_b32 s12, s12, 2
              s_add_u32 s12, s12, {WS_FU}
              s_waitcnt vmcnt(0)""")
        self.flag("s12", 4, 0xffffffff)
        self.stamp()
        if "xnl" in self.opts: a("s_endpgm")
        self.spoll([("s9", 0, 16), ("s9", 64, 16)], sleep=self.P("usleep", 1), prio=self.P("up", 2) if self.P("up", 2) >= 0 else None)
        self.stamp()
        UW = 16
        a(f"s_lshl_b32 s9, s6, 12\ns_add_u32 s9, s9, {WS_UT}")
        tu = []
        for c in range(3):
            if c == 2:
                a(f"s_cmp_eq_u32 s7, 2\ns_cselect_b32 s9, 0x7ff00000, s9")
            for p in range(4):
                a(f"buffer_load_dwordx4 v[{UW+16*c+4*p}:{UW+16*c+4*p+3}], v2, {sWS}, s9 offen offset:{1024*p} sc1")
            tu.append(a.vmt())
            if c < 2: a("s_add_u32 s9, s9, 4096")
        a(f"""v_and_b32 v6, 1, v1
              v_lshlrev_b32 v6, 4, v6
              v_lshrrev_b32 v7, 1, v1
              s_mul_i32 s9, s7, 3
              s_sub_u32 s9, s9, 1
              v_min_u32 v7, s9, v7
              v_mul_u32_u24 v7, {CPY}, v7
              v_add_u32 v6, v6, v7
              v_mov_b32 v12, 0
              v_mov_b32 v13, 0
              v_mov_b32 v14, 0
              v_mov_b32 v15, 0
              v_add_u32 v5, {CPB}, v2
              ds_write_b128 v6, v[12:15] offset:{CPB}""")
        C3 = 64
        for c in range(3):
            a.wait(vm=tu[c])
            if c == 2: a("s_cmp_eq_u32 s7, 2\ns_cbranch_scc1 LW3c")
            for p in range(4):
                w = UW + 16 * c + 4 * p; T = 112 + 16 * (p % 2); c3 = C3 + 16 * c + 4 * p
                base = c * CSTR + 32 + 1024 * p
                if p == 0:
                    a(f"v_mov_b32 v{T}, 0\nv_mov_b32 v{T+12}, 0")
                else:
                    a(f"v_mov_b32_dpp v{T}, v{w-1} wave_ror:1 {DPP}\nv_mov_b32_dpp v{T+12}, v{w-2} wave_ror:1 {DPP}")
                a(f"ds_write_b128 v5, v[{w}:{w+3}] offset:{base}")
                a(f"v_mov_b32_dpp v{T}, v{w+3} wave_shr:1 {DPP}\nv_mov_b32_dpp v{T+12}, v{w+2} wave_shr:1 {DPP}")
                for i in range(3): a(f"v_mov_b32 v{T+1+i}, v{w+i}")
                for i in range(4): a(f"v_alignbit_b32 v{T+4+i}, v{w+i}, v{T+i}, 16")
                a(f"v_alignbit_b32 v{c3}, v{T}, v{T+12}, 16")
                for i in range(1, 4): a(f"v_alignbit_b32 v{c3+i}, v{T+i}, v{T+i-1}, 16")
                a(f"""ds_write_b128 v5, v[{T+4}:{T+7}] offset:{base + CPY}
                      ds_write_b128 v5, v[{T}:{T+3}] offset:{base + 2*CPY}""")
        a("LW3c:\ns_mov_b32 s8, 0")
        self.conv_addr("s8", 3, 4)
        a(f"""v_mov_b32 v6, {CSTR}
              v_mov_b32 v7, {VSTR}
              v_cndmask_b32 v6, v6, v7, vcc
              v_add_u32 v11, v3, v6
              v_add_u32 v16, v11, v6
              v_and_b32 v6, 15, v1
              v_lshrrev_b32 v7, 4, v1
              v_lshlrev_b32 v5, 5, v6
              v_lshl_add_u32 v5, v7, 3, v5
              v_lshlrev_b32 v6, 5, v6
              v_lshrrev_b32 v7, 5, v1
              v_lshl_add_u32 v6, v7, 4, v6
              v_bfe_u32 v7, v1, 4, 1
              v_lshl_add_u32 v0, v7, 9, v6          ; delta 1
              v_and_b32 v6, 1, v1
              v_lshlrev_b32 v6, 4, v6
              v_bfe_u32 v7, v1, 1, 2
              v_min_u32 v7, 2, v7
              v_mul_u32_u24 v7, {VSTR}, v7
              v_add_u32 v6, v6, v7
              s_mov_b32 s12, 0xffff0000
              s_lshl_b32 s9, s6, 12
              s_add_u32 s9, s9, {WS_AT}
              s_waitcnt lgkmcnt(0)""")
        self.stamp()
        if self.opts & {"cM", "cW"}: a("s_endpgm")
        a("s_barrier")
        a("ds_write_b128 v6, v[12:15]")
        for c in range(3):
            for p in range(4):
                c3 = C3 + 16 * c + 4 * p
                a(f"ds_write_b128 v2, v[{c3}:{c3+3}] offset:{c * VSTR + 32 + 1024 * p}")
        UU = 20; ud = {}
        for c in range(3):
            for k, n in enumerate((3, 4)):
                r = UU + 4 * c + 2 * k
                a(f"ds_read_b64 v[{r}:{r+1}], v5 offset:{CPB + c * CSTR + 32 + 512*n}")
                ud[(c, n)] = 32 + 8 * c + 4 * k
        a("s_waitcnt lgkmcnt(0)\ns_barrier")
        if self.P("cp", 2): a(f"s_setprio {self.P('cp', 2)}")
        self.stamp()
        AS = (64, 84); BS = (104, 124)
        va = (3, 11, 16)
        accs = [{3: 144 + 8 * c, 4: 148 + 8 * c} for c in range(3)]
        udf = lambda c: self.ud_fill(UU + 4 * c, ud[(c, 3)], 8 + c) + self.ud_fill(UU + 4 * c + 2, ud[(c, 4)], 8 + c)
        def epi(c):
            L = self.epi_pair(accs[c][3], accs[c][4], ud[(c, 3)], ud[(c, 4)], 168 + 4 * c, 0, "s9", 512 * 3)
            return L + ["s_add_u32 s9, s9, 4096"]
        f = udf(0) + udf(1)
        t = self.conv([3, 4], accs[0], AS, BS, 3, 4, va[0], 0, f, nxt=(va[1], VSTR)); assert not f
        f = epi(0) + udf(2)
        t = self.conv([3, 4], accs[1], AS, BS, 3, 4, va[1], VSTR, f, first_issued=t, nxt=(va[2], 2 * VSTR)); assert not f
        a("s_cmp_eq_u32 s7, 2\ns_cbranch_scc1 LW3e")
        f = epi(1)
        self.conv([3, 4], accs[2], AS, BS, 3, 4, va[2], 2 * VSTR, f, first_issued=t); assert not f
        for x in epi(2): a(x)
        a("s_branch LW3f\nLW3e:\ns_waitcnt lgkmcnt(0)\ns_nop 7")
        for x in epi(1): a(x)
        a(f"""LW3f:
              s_lshl_b32 s9, s6, 2
              s_add_u32 s9, s9, {WS_FA + 12 * FAS}
              v_mov_b32 v8, {TAG}
              v_and_b32 v9, 7, v1
              v_mul_u32_u24 v9, {FAS}, v9
              v_lshrrev_b32 v10, 3, v1
              v_lshl_add_u32 v9, v10, 2, v9
              s_lshl_b32 s7, s7, 3
              s_bfm_b64 s[10:11], s7, 0
              s_waitcnt vmcnt(0)
              s_mov_b64 exec, s[10:11]
              buffer_store_dword v8, v9, {sWS}, s9 offen sc1
              s_mov_b64 exec, -1""")
        self.end()
        self.aux()
        a("Lexit:\ns_endpgm")

    def aux(self):
        a = self.a
        STG = (2 * VSTR, CPB + 2 * CSTR)
        a(f"""LAUX:
              s_cmp_eq_u32 s5, 255
              s_cbranch_scc1 {"Lexit" if "noC" in self.opts else "LUPD"}
              s_lshl_b32 s8, s68, 4
              s_add_u32 s8, s8, s69
              s_sub_u32 s8, s8, 16           ; w2i
              s_cmp_ge_u32 s8, 120
              s_cbranch_scc1 Lexit""")
        if self.P("wp", 3): a(f"s_setprio {self.P('wp', 3)}")
        a(f"""s_mul_i32 s9, s8, 5462
              s_lshr_b32 s9, s9, 16          ; db = w2i / 12
              s_mul_i32 s10, s9, 12
              s_sub_u32 s10, s8, s10         ; fbp
              v_lshrrev_b32 v2, 3, v1
              v_mul_u32_u24 v2, 1280, v2
              v_and_b32 v3, 7, v1
              v_lshl_add_u32 v2, v3, 4, v2
              s_mul_i32 s11, s10, {128*1280}
              s_lshl_b32 s12, s9, 7
              s_add_u32 s11, s11, s12
              v_bfe_u32 v3, v1, 4, 1
              v_lshlrev_b32 v3, 4, v3
              v_lshrrev_b32 v4, 5, v1
              v_lshl_add_u32 v3, v4, 2, v3
              v_bfe_u32 v4, v1, 2, 2
              v_add_u32 v3, v3, v4
              v_lshlrev_b32 v3, 7, v3
              v_and_b32 v4, 3, v1
              v_lshl_add_u32 v3, v4, 3, v3
              v_add_u32 v4, {STG[1]}, v3
              v_add_u32 v3, {STG[0]}, v3""")
        self.kwait()
        self.srd(52, 38, 1966080)
        tl = []
        for p in range(16):
            a(f"s_mov_b32 m0, {STG[p // 8] + 1024 * (p % 8)}\nbuffer_load_dwordx4 v2, {sW2}, s11 offen lds")
            if p < 15: a(f"s_add_u32 s11, s11, {8*1280}")
            tl.append(a.vmt())
        self.wssrd()
        a("v_lshlrev_b32 v2, 4, v1")
        for dt in range(4):
            a(f"""s_lshl_b32 s12, s9, 2
                  s_add_u32 s12, s12, {dt}
                  s_mul_i32 s13, s12, 205
                  s_lshr_b32 s13, s13, 10
                  s_mul_i32 s14, s13, 235
                  s_add_u32 s12, s12, s14
                  s_mul_i32 s14, s10, 20
                  s_add_u32 s12, s12, s14
                  s_lshl_b32 s12, s12, 10
                  s_add_u32 s{72+dt}, s12, {WS_W2F}""")
        a(f"""s_mul_i32 s12, s10, 22
              s_lshr_b32 s12, s12, 6          ; fbp / 3
              s_mul_i32 s12, s12, 5
              s_add_u32 s12, s12, s10         ; word = 8 (fbp/3) + fbp%3
              s_cmp_ge_u32 s9, 5
              s_cselect_b32 s13, 1, 0
              s_sub_u32 s14, s9, s13
              s_mul_i32 s13, s13, 5
              s_sub_u32 s76, s9, s13          ; db % 5
              s_lshl_b32 s14, s14, 10
              s_add_u32 s12, s12, s14
              s_lshl_b32 s12, s12, 2
              s_add_u32 s12, s12, {WS_FW - 4096 + 12}
              v_and_b32 v5, 31, v1
              v_lshlrev_b32 v5, 7, v5
              v_cmp_gt_u32 vcc, 32, v1
              v_mov_b32 v6, {4096 - 12}
              v_cndmask_b32 v6, 0, v6, vcc
              v_add_u32 v5, v5, v6
              s_waitcnt lgkmcnt(0)
              s_add_u32 {TAG}, {TAG}, 1""")
        for kk in range(4):
            a.wait(vm=tl[4 * kk + 3])
            if kk == 0: self.stamp()
            for dt in range(4):
                r = 16 + 4 * (kk * 4 + dt)
                for h in range(2):
                    a(f"ds_read_b64_tr_b16 v[{r+2*h}:{r+2*h+1}], v{3 + kk // 2} offset:{(32*(kk % 2) + 8*h)*128 + 32*dt}")
        t1 = a.lgt()
        for kk in range(4):
            for dt in range(4):
                r = 16 + 4 * (kk * 4 + dt)
                a.wait(lg=t1 - 2 * (15 - (kk * 4 + dt)))
                if "xns" not in self.opts: a(f"buffer_store_dwordx4 v[{r}:{r+3}], v2, {sWS}, s{72+dt} offen {self.par.get('xst', 'sc1').replace('_', ' ')}\ns_add_u32 s{72+dt}, s{72+dt}, 5120")
        a("""s_cmp_lt_u32 s76, 4
             s_cselect_b32 s10, -1, 0
             s_cmp_ge_u32 s76, 1
             s_cselect_b32 s11, -1, 0
             s_waitcnt vmcnt(0)
             s_mov_b64 exec, s[10:11]""")
        if "xnf" not in self.opts: self.flag("s12", 4, None, pre=True)
        else: a("s_mov_b64 exec, -1")
        self.end()
        a("LUPD:")
        self.kwait(); self.wssrd()
        a(f"""s_waitcnt lgkmcnt(0)
              s_add_u32 {TAG}, {TAG}, 1
              s_barrier
              s_barrier""")
        self.stamp()
        a("v_lshrrev_b32 v2, 3, v1\nv_lshlrev_b32 v2, 10, v2\nv_and_b32 v3, 7, v1\nv_lshl_add_u32 v2, v3, 4, v2")
        for i in range(4 if "noG" not in self.opts else 0):
            a(f"s_mov_b32 s12, {WS_FH + 8192*i}"); self.poll(2, 4, soff="s12", w=4, sleep=4)
        a("v_lshlrev_b32 v2, 4, v1")
        for part in range(2):
            for i in range(3):
                if i == 2: a("v_min_u32 v3, 31, v1\nv_lshlrev_b32 v3, 4, v3")
                a(f"s_mov_b32 s12, {WS_FA + 12*FAS*part + 1024*i}"); self.poll(2 if i < 2 else 3, 4, soff="s12", w=4, sleep=4)
        a(f"s_mov_b32 s12, {WS_E}")
        self.flag("s12", 4)
        self.end()

    def build(self):
        self.prologue(); self.role_g(); self.role_c(); self.wave3()
        body = self.a.finish()
        hdr = open("cdna_kernels/" + NAME + ".s.ref").read().split("; Override launch")[0]
        return hdr + f"""; @launch grid=(512,1,1) block=(256,1,1) lds=81920
.amdgcn_target "amdgcn-amd-amdhsa--gfx950"
.text
.globl {KN}
.p2align 8
.type {KN},@function
{KN}:
{body}.section .rodata,"a"
.p2align 6
.amdhsa_kernel {KN}
  .amdhsa_next_free_vgpr 256
  .amdhsa_next_free_sgpr 102
  .amdhsa_accum_offset 256
  .amdhsa_group_segment_fixed_size 0
  .amdhsa_kernarg_size 128
  .amdhsa_user_sgpr_count 2
  .amdhsa_user_sgpr_kernarg_segment_ptr 1
  .amdhsa_system_sgpr_workgroup_id_x 1
  .amdhsa_float_denorm_mode_32 3
.end_amdhsa_kernel
"""

if __name__ == "__main__":
    out = sys.argv[1] if len(sys.argv) > 1 else "cdna_kernels/" + NAME + ".s"
    prof = "prof" in sys.argv; dumpk = "dumpk" in sys.argv
    open(out, "w").write(Gen(prof, dumpk, sys.argv[2:]).build())
    print("wrote", out)
```
